```python
import torch

def _softmax(x, axis=-1):
    return torch.softmax(x, dim=axis)
def _gelu(x):
    return torch.nn.functional.gelu(x, approximate="tanh")
def _silu(x):
    return torch.nn.functional.silu(x)
def _sigmoid(x):
    return torch.sigmoid(x)
def _layernorm(x, axis=-1, eps=1e-5):
    m = x.mean(dim=axis, keepdim=True)
    v = x.var(dim=axis, keepdim=True, unbiased=False)
    return (x - m) / torch.sqrt(v + eps)
def _scatter_add(tgt, idx, src, axis=0):
    return tgt.clone().index_add_(axis, idx, src)
def _segment_sum(src, seg, n):
    out = torch.zeros((n,) + src.shape[1:], dtype=src.dtype)
    return out.index_add_(0, seg, src)
def _pad(x, pw):
    flat = tuple(v for pair in reversed(pw) for v in pair)
    return torch.nn.functional.pad(x, flat)

kernel_name = 'sequential_preLN__sliding_block_cached__glu_gated_glu__decode'

def setup_inputs():

    _w = (lambda a: (lambda t: t.to(torch.bfloat16) if t.is_floating_point() else t)(torch.as_tensor(a)))
    def _A_setup():
        B, Sq, D = 1, 1, 640
        Hq, Hkv, Sk, Dh = 32, 32, 8192, 192
        assert Hq % Hkv == 0, (Hq, Hkv)
        return {
            "x": _w((lambda *s: torch.randn(*s, dtype=torch.bfloat16) * 0.05)(B, Sq, D)),
            "k_cache": _w((lambda *s: torch.randn(*s, dtype=torch.bfloat16) * 3.2)(B, Hkv, Sk, Dh)),
            "v_cache": _w((lambda *s: torch.randn(*s, dtype=torch.bfloat16) * 0.4)(B, Hkv, Sk, Dh)),
            "wq": _w((lambda *s: torch.randn(*s, dtype=torch.bfloat16) * 3.2)(D, Hq * Dh) * (D ** -0.5)),
            "wo": _w((lambda *s: torch.randn(*s, dtype=torch.bfloat16) * 0.4)(Hq * Dh, D) * ((Hq * Dh) ** -0.5)),
        }
    _A_in = _A_setup()

    def _B_setup():
        B, S, D, F = 1, 1, 640, 1536
        return {
            "x": _w((lambda *s: torch.randn(*s, dtype=torch.bfloat16) * 0.05)(B, S, D)),
            "w_gate": _w((lambda *s: torch.randn(*s, dtype=torch.bfloat16) * 0.05)(D, F)),
            "w_up": _w((lambda *s: torch.randn(*s, dtype=torch.bfloat16) * 0.05)(D, F)),
            "w_down": _w((lambda *s: torch.randn(*s, dtype=torch.bfloat16) * 0.05)(F, D)),
        }
    _B_in = _B_setup()

    return {
        "A_x": _A_in["x"],
        "A_k_cache": _A_in["k_cache"],
        "A_v_cache": _A_in["v_cache"],
        "A_wq": _A_in["wq"],
        "A_wo": _A_in["wo"],
        "B_x": _B_in["x"],
        "B_w_gate": _B_in["w_gate"],
        "B_w_up": _B_in["w_up"],
        "B_w_down": _B_in["w_down"],
    }

def reference(A_x, A_k_cache, A_v_cache, A_wq, A_wo, B_x, B_w_gate, B_w_up, B_w_down):
    def _A_ref(x, k_cache, v_cache, wq, wo):
        B, Sq, D = x.shape
        Hq, Dh = 32, 192
        Hkv, Sk = k_cache.shape[1], k_cache.shape[2]
        W = min(4096, max(256, Sk // 4))
        rep = Hq // Hkv
        q = (lambda x, *d: x.permute(*d))((x @ wq).reshape(B, Sq, Hq, Dh), 0, 2, 1, 3)
        k = (lambda x, n, axis: torch.repeat_interleave(x, n, dim=axis))(k_cache[:, :, Sk - W:, :], rep, axis=1)
        v = (lambda x, n, axis: torch.repeat_interleave(x, n, dim=axis))(v_cache[:, :, Sk - W:, :], rep, axis=1)
        scores = torch.einsum("bhqd,bhkd->bhqk", q, k) * (Dh ** -0.5)
        p = _softmax(scores, axis=-1)
        o = torch.einsum("bhqk,bhkd->bhqd", p, v)
        return (lambda x, *d: x.permute(*d))(o, 0, 2, 1, 3).reshape(B, Sq, Hq * Dh) @ wo

    def _B_ref(x, w_gate, w_up, w_down):
        g = torch.einsum("bsd,df->bsf", x, w_gate)
        u = torch.einsum("bsd,df->bsf", x, w_up)
        h = _sigmoid(g) * u
        return torch.einsum("bsf,fd->bsd", h, w_down)

    x = A_x
    h = x + _A_ref(_layernorm(x, axis=-1), A_k_cache, A_v_cache, A_wq, A_wo)
    h2 = h + _B_ref(_layernorm(h, axis=-1), B_w_gate, B_w_up, B_w_down)
    return h2
```

```python
import re
TRANS = ("v_exp_f32", "v_log_f32", "v_rcp_f32", "v_rsq_f32", "v_sqrt_f32", "v_sin_f32", "v_cos_f32")
REG = re.compile(r"\b([vsa])(\d+)\b|\b([vsa])\[(\d+):(\d+)\]|\b(vcc|exec|m0)\b")

def regs_of(op):
    out = set()
    for m in REG.finditer(op):
        if m.group(1): out.add((m.group(1), int(m.group(2))))
        elif m.group(3):
            for i in range(int(m.group(4)), int(m.group(5)) + 1): out.add((m.group(3), i))
        else: out.add((m.group(6), 0))
    return out

class Ins:
    def __init__(self, text):
        self.text = text
        t = text.split(";")[0].strip()
        parts = t.split(None, 1)
        self.mn = parts[0]
        rest = parts[1] if len(parts) > 1 else ""
        ops, depth, cur = [], 0, ""
        for ch in rest:
            if ch == "[": depth += 1
            if ch == "]": depth -= 1
            if ch == "," and depth == 0: ops.append(cur.strip()); cur = ""
            else: cur += ch
        if cur.strip(): ops.append(cur.strip())
        self.mods = ""
        if ops:
            sp = ops[-1].split(None, 1)
            ops[-1] = sp[0]
            if len(sp) > 1: self.mods = sp[1]
        self.ops = ops
        mn = self.mn
        self.valu = mn.startswith("v_")
        self.dpp = self.valu and bool(re.search(r"quad_perm|row_|wave_", self.mods))
        self.trans = mn.split("_e")[0] in TRANS or mn in TRANS
        self.dot = mn.startswith("v_dot")
        self.mfma = mn.startswith("v_mfma")
        self.perml = mn.startswith("v_permlane")
        self.rdlane = mn.startswith("v_readlane") or mn.startswith("v_readfirstlane")
        self.vmem = mn.startswith("buffer_") or mn.startswith("global_")
        self.ds = mn.startswith("ds_")
        self.w = set(); self.r = set()
        R = [regs_of(o) for o in ops]
        if self.valu:
            if self.perml:
                self.w = R[0] | R[1]; self.r = R[0] | R[1]
            else:
                self.w = set(R[0])
                k = 1
                if re.match(r"v_(add|sub|subrev|addc|subb)_co", mn): self.w |= R[1]; k = 2
                for x in R[k:]: self.r |= x
                if mn.startswith("v_fmac") or mn.startswith("v_dot2c") or self.dpp: self.r |= R[0]
                if mn.startswith("v_cndmask") and len(ops) == 3: self.r.add(("vcc", 0))
        elif self.vmem:
            if "load" in mn and "lds" not in self.mods and "_lds_" not in mn:
                self.w = set(R[0])
                for x in R[1:]: self.r |= x
                if "d16" in mn: self.r |= R[0]
            else:
                for x in R: self.r |= x
            self.widestore = ("store" in mn) and ("x3" in mn or "x4" in mn)
            if self.widestore:
                self.sdata = R[0] if mn.startswith("buffer_") else R[1]
        elif self.ds:
            if "read" in mn or "rtn" in mn or "permute" in mn or "swizzle" in mn:
                self.w = set(R[0])
                for x in R[1:]: self.r |= x
            else:
                for x in R: self.r |= x
        else:
            if mn.startswith("s_cmp") or mn.startswith("s_cbranch") or mn.startswith("s_waitcnt") or mn in ("s_barrier", "s_nop", "s_sleep", "s_branch", "s_endpgm", "s_setprio"):
                for x in R: self.r |= x
            elif R:
                self.w = set(R[0])
                for x in R[1:]: self.r |= x

class Gen:
    def __init__(self):
        self.L = []
        self.hists = [[]]
        self.pending = {}
        self.vm = []
    def raw(self, s): self.L.append(s)
    def label(self, name):
        self.L.append(name + ":")
        self.hists += self.pending.pop(name, [])
        self.hists = [h for h in self.hists if h is not None]
        if not self.hists: self.hists = [[]]
    def _need1(self, hist, I):
        need = 0
        dist = 0
        for P in reversed(hist):
            if P.valu:
                wv = {x for x in P.w if x[0] == "v"}
                ws = {x for x in P.w if x[0] in ("s", "vcc", "exec")}
                rv = {x for x in I.r if x[0] == "v"}
                rs = {x for x in I.r if x[0] in ("s", "vcc", "exec")}
                iw = {x for x in I.w if x[0] == "v"}
                req = 0
                if wv & rv:
                    if I.dpp or I.perml: req = max(req, 2)
                    if I.rdlane: req = max(req, 1)
                    if P.trans and not I.trans: req = max(req, 1)
                if I.mfma and not P.mfma and (wv & rv): req = max(req, 2)
                if P.mfma:
                    if I.mfma:
                        ab = regs_of(I.ops[1]) | regs_of(I.ops[2]); cc = regs_of(I.ops[3])
                        if wv & ab: req = max(req, 8)
                        if (wv & cc) and wv != cc: req = max(req, 6)
                        if (wv & iw) and not (wv & cc): req = max(req, 8)
                    elif wv & (rv | iw): req = max(req, 8)
                    if not I.mfma and I.valu and (regs_of(P.ops[3]) & iw): req = max(req, 3)
                if P.dot and (wv & (rv | iw)):
                    if I.dot and I.mn == P.mn:
                        ab = set()
                        for o in I.ops[1:3]: ab |= regs_of(o)
                        if wv & ab: req = max(req, 3)
                    else: req = max(req, 3)
                if ws & rs:
                    if I.valu: req = max(req, 4 if I.rdlane else 2)
                    if I.vmem: req = max(req, 5)
                    if not I.valu and not I.vmem and not I.mn.startswith("s_cbranch"): req = max(req, 1)
                if ("exec", 0) in P.w and (I.dpp): req = max(req, 5)
                need = max(need, req - dist)
            if P.vmem and getattr(P, "widestore", False):
                if P.sdata & I.w: need = max(need, 2 - dist)
            d = 1
            if P.mn == "s_nop": d = int(P.ops[0]) + 1
            dist += d
            if dist > 10: break
        return need
    def A(self, s):
        if "\n" in s:
            for l in s.splitlines(): self.A(l.strip())
            return
        I = Ins(s)
        n = max(self._need1(h, I) for h in self.hists)
        new = []
        if n > 0:
            nop = Ins(f"s_nop {n-1}")
            self.L.append("    " + nop.text); new.append(nop)
        self.L.append("    " + s)
        new.append(I)
        hs = []
        for h in self.hists:
            h2 = (h + new)[-12:]
            if not any(len(h2) == len(o) and all(a is b for a, b in zip(h2, o)) for o in hs): hs.append(h2)
        self.hists = hs
        if I.mn.startswith("s_cbranch") or I.mn == "s_branch":
            self.pending.setdefault(I.ops[0], []).extend([list(h) for h in self.hists])
            if I.mn == "s_branch": self.hists = [[]]
        if I.mn == "s_endpgm": self.hists = [[]]
    def vmem(self, s, tag=None, optional=False):
        self.A(s); self.vm.append([tag, optional])
    def wait(self, tag, keep=False):
        idx = max((i for i, e in enumerate(self.vm) if e[0] == tag), default=None)
        if idx is None: return
        n = sum(1 for e in self.vm[idx + 1:] if not e[1])
        self.A(f"s_waitcnt vmcnt({n})")
        if keep:
            self.vm = [e for e in self.vm if e[0] != tag]
        else:
            self.vm = self.vm[idx + 1:]
    def wait_all(self, keep=False):
        self.A("s_waitcnt vmcnt(0)")
        if not keep: self.vm = []
    def text(self): return "\n".join(self.L) + "\n"
```

```python
import sys
sys.path.insert(0, "work")
from asmgen import Gen
KN = "sequential_preLN__sliding_block_cached__glu_gated_glu__decode_kernel"
RS = 5120
OFF_QP, OFF_OP, OFF_ML, OFF_FL, OFF_T = 0, 768, 1536, 1664, 2048
L_GU = 0
L_QB, L_ML, L_MF, L_HB = 2048, 2432, 2560, 2816
L_QS = 5632
L_OS = 16384
L_WS = 40960
LDS_BYTES = 49152
OOB = 0x7ff00000
LOG2E = 0x3fb8aa3b
SPIN = 1 << 16
STAMP_BASE = 0x200000
NST = 14
HEADER = open("sequential_preLN__sliding_block_cached__glu_gated_glu__decode.s.ref").read().split("; Override launch")[0]

vKV, vL4, vS0, vS1, vXO, vCOL = 3, 4, 11, 12, 13, 15
MK, K0, V0, X0, Q0, AC, BM = 16, 20, 44, 68, 84, 96, 120
vRC4, vL16, vSLOT = 112, 113, 114

def gen(W=2, stamps=False, nt="nt", xearly=2, sleep=1, pf=True):
    g = Gen(); A = g.A
    AC = 96
    def stamp(k):
        if stamps: A(f"s_memrealtime s[{70+2*k}:{71+2*k}]")
    def rne(dst, src):
        A(f"v_cvt_pk_bf16_f32 v{dst}, v{src}, v{src}")
        A(f"v_and_b32 v{dst}, 0xffff0000, v{dst}")
    def dpp(op, d, a, b, m, rm="0xf", bm="0xf"):
        A(f"{op}_dpp v{d}, v{a}, v{b} {m} row_mask:{rm} bank_mask:{bm}")
    def wave_red(op, v, sdst, full=True):
        if full:
            for m in ("quad_perm:[1,0,3,2]", "quad_perm:[2,3,0,1]", "row_half_mirror"): dpp(op, v, v, v, m)
        dpp(op, v, v, v, "row_ror:8")
        dpp(op, v, v, v, "row_bcast:15", rm="0xa")
        dpp(op, v, v, v, "row_bcast:31", rm="0xc")
        A(f"v_readlane_b32 s{sdst}, v{v}, 63")
    def red8(vs, op="v_add_f32"):
        for m in ("quad_perm:[1,0,3,2]", "quad_perm:[2,3,0,1]", "row_half_mirror"):
            for v in vs: dpp(op, v, v, v, m)
    def buildB(dst, packed):
        for r in range(4): A(f"v_and_b32 v{dst+r}, v{packed}, v{MK+r}")
    def mfma(d, a, w, first):
        c = "0" if first else f"v[{d}:{d+3}]"
        A(f"v_mfma_f32_16x16x32_bf16 v[{d}:{d+3}], v[{a}:{a+3}], v[{w}:{w+3}], {c}")
    def exec_valid(): A("s_mov_b64 exec, s[46:47]" if False else "s_mov_b64 exec, s[98:99]")
    def exec_all(): A("s_mov_b64 exec, -1")
    def slot_write(d, off, addr):
        A(f"ds_write_b128 v{addr}, v[{d}:{d+3}] offset:{off}")
    def slot_sum(n, off, addr, buf):
        for i in range(n): A(f"ds_read_b128 v[{buf+4*i}:{buf+4*i+3}], v{addr} offset:{off + 1024*i}")
        live = list(range(n))
        k = n
        first = True
        while len(live) > 1:
            nxt = []
            for a in range(0, len(live) - 1, 2):
                if first: A(f"s_waitcnt lgkmcnt({n - 2 - a})")
                for r in range(4): A(f"v_add_f32 v{buf+4*live[a]+r}, v{buf+4*live[a]+r}, v{buf+4*live[a+1]+r}")
                nxt.append(live[a])
            if len(live) % 2:
                if first: A("s_waitcnt lgkmcnt(0)")
                nxt.append(live[-1])
            live = nxt; first = False
        red4_rows(buf)
    def mac8(acc, w, lo, hi, first):
        for r in range(4):
            c0 = "0" if first else f"v{acc+2*r}"
            c1 = "0" if first else f"v{acc+2*r+1}"
            A(f"v_dot2_f32_bf16 v{acc+2*r}, v{w+r}, v{lo}, {c0}")
            A(f"v_dot2_f32_bf16 v{acc+2*r+1}, v{w+r}, v{hi}, {c1}")
    def ln_stats(vals, vmean, vrden, t0, t1, st):
        A(f"v_add_f32 v{t0}, v{vals[0]}, v{vals[1]}")
        A(f"v_add_f32 v{t1}, v{vals[2]}, v{vals[3]}")
        for i in range(4, len(vals), 2):
            A(f"v_add_f32 v{t0}, v{t0}, v{vals[i]}")
            A(f"v_add_f32 v{t1}, v{t1}, v{vals[i+1]}")
        A(f"v_add_f32 v{t0}, v{t0}, v{t1}")
        A(f"v_mov_b32 v{vmean}, 0x3acccccd")
        wave_red("v_add_f32", t0, st)
        A(f"v_mul_f32 v{vmean}, s{st}, v{vmean}")
        for v in vals: A(f"v_sub_f32 v{v}, v{v}, v{vmean}")
        A(f"v_mul_f32 v{t0}, v{vals[0]}, v{vals[0]}"); A(f"v_mul_f32 v{t1}, v{vals[1]}, v{vals[1]}")
        for i in range(2, len(vals), 2):
            A(f"v_fmac_f32 v{t0}, v{vals[i]}, v{vals[i]}"); A(f"v_fmac_f32 v{t1}, v{vals[i+1]}, v{vals[i+1]}")
        A(f"v_add_f32 v{t0}, v{t0}, v{t1}")
        A(f"v_mov_b32 v{t1}, 0x3acccccd")
        rne(vmean, vmean)
        wave_red("v_add_f32", t0, st)
        A(f"v_mul_f32 v{t0}, s{st}, v{t1}")
        rne(t0, t0)
        A(f"v_add_f32 v{t0}, 0x3727c5ac, v{t0}")
        rne(t0, t0)
        A(f"v_sqrt_f32 v{t0}, v{t0}")
        rne(t0, t0)
        A(f"v_rcp_f32 v{vrden}, v{t0}")
    def ln_apply(vs, vmean, vrden):
        for v in vs: A(f"v_sub_f32 v{v}, v{v}, v{vmean}")
        for v in vs: rne(v, v)
        for v in vs: A(f"v_mul_f32 v{v}, v{v}, v{vrden}")
        for v in vs: A(f"v_cvt_pk_bf16_f32 v{v}, v{v}, v{v}")
    def srd(d, b, n):
        A(f"s_mov_b32 s{d}, s{b}"); A(f"s_mov_b32 s{d+1}, s{b+1}"); A(f"s_mov_b32 s{d+2}, {n}"); A(f"s_mov_b32 s{d+3}, 0x20000")
    def sentinel_check(regs, t):
        rs = list(regs)
        if len(rs) == 1:
            A(f"v_cmp_eq_u32 vcc, -1, v{rs[0]}"); return
        if len(rs) == 2: A(f"v_max_u32 v{t}, v{rs[0]}, v{rs[1]}"); rs = []
        else: A(f"v_max3_u32 v{t}, v{rs[0]}, v{rs[1]}, v{rs[2]}"); rs = rs[3:]
        while rs:
            if len(rs) >= 2: A(f"v_max3_u32 v{t}, v{t}, v{rs[0]}, v{rs[1]}"); rs = rs[2:]
            else: A(f"v_max_u32 v{t}, v{t}, v{rs[0]}"); rs = rs[1:]
        A(f"v_cmp_eq_u32 vcc, -1, v{t}")
    def poll_loop(name, issue, check, slp=sleep):
        A("s_mov_b32 s69, 0")
        g.label(f"L_{name}")
        issue()
        A("s_waitcnt vmcnt(0)")
        check()
        A(f"s_cbranch_vccz L_{name}_ok")
        if slp: A(f"s_sleep {slp}")
        A("s_add_u32 s69, s69, 1")
        A(f"s_cmp_lt_u32 s69, {SPIN}")
        A(f"s_cbranch_scc1 L_{name}")
        g.label(f"L_{name}_ok")
    def red4_rows(a):
        A(f"v_permlane32_swap_b32 v{a}, v{a+1}"); A(f"v_permlane32_swap_b32 v{a+2}, v{a+3}")
        A(f"v_add_f32 v{a}, v{a}, v{a+1}"); A(f"v_add_f32 v{a+2}, v{a+2}, v{a+3}")
        A(f"v_permlane16_swap_b32 v{a}, v{a+2}")
        A(f"v_add_f32 v{a}, v{a}, v{a+2}")

    g.raw(HEADER.rstrip("\n"))
    g.raw(f"; @launch grid=(256,1,1) block=(1024,1,1) lds={LDS_BYTES}")
    g.raw('.amdgcn_target "amdgcn-amd-amdhsa--gfx950"')
    g.raw(".text"); g.raw(f".globl {KN}"); g.raw(".p2align 8"); g.raw(f".type {KN},@function"); g.raw(f"{KN}:")
    A("s_getpc_b64 s[62:63]")
    A("s_cmp_ge_u32 s2, 256"); A("s_cbranch_scc1 L_end")
    stamp(0)
    A("s_load_dwordx16 s[4:19], s[0:1], 0")
    A("s_load_dwordx8 s[20:27], s[0:1], 64")
    A("v_lshlrev_b32 v5, 4, v0")
    A("s_and_b32 s62, s62, 0xffffff00")
    A("v_lshrrev_b32 v4, 6, v0")
    if pf:
        A("v_min_u32 v5, CODE_BYTES-16, v5")
        g.vmem(f"global_load_dwordx4 v[{BM}:{BM+3}], v5, s[62:63]", "pf")
    A("v_and_b32 v0, 63, v0")
    A("v_readfirstlane_b32 s3, v4")
    A("v_lshrrev_b32 v1, 3, v0")
    A("v_and_b32 v2, 7, v0")
    A("s_and_b32 s48, s2, 7"); A("s_lshr_b32 s49, s2, 3"); A("s_lshr_b32 s50, s49, 3"); A("s_and_b32 s51, s49, 7")
    A("s_lshl_b32 s52, s48, 2"); A("s_add_u32 s52, s52, s50")
    A("s_mul_i32 s53, s52, 3145728"); A("s_mul_i32 s60, s51, 98304"); A("s_add_u32 s53, s53, s60")
    A("s_mul_i32 s60, s3, 6144"); A("s_add_u32 s53, s53, s60"); A(f"s_add_u32 s53, s53, {6144*384}")
    A("v_mul_u32_u24 v3, 384, v1"); A("v_lshl_add_u32 v3, v2, 4, v3")
    A("s_mul_i32 s61, s3, 171"); A("s_lshr_b32 s61, s61, 9")
    A("s_mul_i32 s68, s61, 3"); A("s_sub_u32 s68, s3, s68")
    A("s_min_u32 s61, s61, 4")
    A("s_mul_i32 s63, s51, 80"); A("s_lshl_b32 s64, s61, 4"); A("s_add_u32 s63, s63, s64")
    A("s_mul_i32 s54, s63, 12288"); A("s_mul_i32 s64, s52, 384"); A("s_add_u32 s54, s54, s64")
    A("s_lshl_b32 s64, s68, 7"); A("s_add_u32 s54, s54, s64")
    A("s_cmp_eq_u32 s3, 15"); A(f"s_cselect_b32 s54, {OOB}, s54")
    A("s_add_u32 s55, s54, 98304")
    A("v_mul_u32_u24 v10, 12288, v1"); A("v_lshl_add_u32 v10, v2, 4, v10")
    A("v_lshlrev_b32 v4, 2, v0")
    A("s_lshl_b32 s64, s63, 1"); A("v_lshl_add_u32 v14, v1, 1, s64")
    A("v_mov_b32 v11, 0"); A("v_mov_b32 v12, 0"); A(f"v_mov_b32 v{Q0}, 0"); A(f"v_mov_b32 v{Q0+1}, 0")
    A("s_mul_i32 s65, s2, %d" % RS)
    A("s_waitcnt lgkmcnt(0)")
    A("s_load_dword s67, s[26:27], 0")
    A("s_add_u32 s26, s26, 4096"); A("s_addc_u32 s27, s27, 0")
    srd(36, 10, 7864320); srd(28, 6, 100663296); srd(32, 8, 100663296)
    A("s_cmp_eq_u32 s3, 15"); A("s_cbranch_scc1 L_w15")
    def init_loads(opt):
        for i in range(5): g.vmem(f"global_load_dword v{5+i}, v4, s[4:5] offset:{i*256}", "xs")
        g.vmem("global_load_short_d16_hi v11, v14, s[4:5]", "xs")
        g.vmem("global_load_short_d16_hi v12, v14, s[4:5] offset:16", "xs")
        g.vmem(f"buffer_load_dwordx4 v[{X0}:{X0+3}], v10, s[36:39], s54 offen {nt}", "wq")
        g.vmem(f"buffer_load_dwordx4 v[{X0+4}:{X0+7}], v10, s[36:39], s55 offen {nt}", "wq")
    init_loads(False)
    A("s_branch L_w15_done")
    g.label("L_w15")
    A("v_lshlrev_b32 v13, 4, v0")
    for r in range(X0 + 4, X0 + 8): A(f"v_mov_b32 v{r}, -1")
    A("v_add_u32 v5, s65, v13")
    for i in range(3): A(f"global_store_dwordx4 v5, v[{X0+4}:{X0+7}], s[26:27] offset:{i*1024} sc1")
    A("s_cmp_lt_u32 s2, 160"); A("s_cbranch_scc1 L_clr2")
    A(f"global_store_dwordx4 v5, v[{X0+4}:{X0+7}], s[26:27] offset:3072 sc1")
    A("v_add_u32 v5, 4096, v5")
    A(f"global_store_dwordx4 v5, v[{X0+4}:{X0+7}], s[26:27] sc1")
    g.label("L_clr2")
    for r in range(X0, X0 + 4): A(f"v_mov_b32 v{r}, 0")
    A(f"ds_write_b128 v13, v[{X0}:{X0+3}]"); A(f"ds_write_b128 v13, v[{X0}:{X0+3}] offset:1024")
    for t in range(3): A(f"ds_write_b64 v13, v[{X0}:{X0+1}] offset:{L_QS + t*3072 + 2560}") if False else None
    A("v_lshlrev_b32 v6, 3, v0")
    for t in range(3): A(f"ds_write_b64 v6, v[{X0}:{X0+1}] offset:{L_QS + t*3072 + 2560}")
    g.label("L_w15_done")
    bulk = [("K", i) for i in range(6)] + [("V", i) for i in range(6)] + [("X", i) for i in range(4)]
    issued = []
    def issue_next(throttle=True):
        nm, i = bulk[len(issued)]
        if throttle and len(issued) >= W:
            pn, pi = issued[len(issued) - W]
            g.wait(f"{pn}{pi}")
        if nm in "KV":
            base = K0 if nm == "K" else V0
            sr = 28 if nm == "K" else 32
            off = (i // 3) * 3072 + (i % 3) * 128
            g.vmem(f"buffer_load_dwordx4 v[{base+4*i}:{base+4*i+3}], v{vKV}, s[{sr}:{sr+3}], s53 offen offset:{off} {nt}", f"{nm}{i}")
        else:
            sr = 40 if i < 2 else 44
            g.vmem(f"buffer_load_dwordx4 v[{X0+4*i}:{X0+4*i+3}], v{vXO}, s[{sr}:{sr+3}], s{56+i} offen {nt}", f"X{i}")
        issued.append((nm, i))
    for _ in range(W): issue_next()
    A("s_waitcnt lgkmcnt(0)")
    A("s_barrier")
    A("s_add_u32 s67, s67, 1")
    A("s_cmp_lg_u32 s3, 15"); A("s_cbranch_scc1 L_nofl")
    A("v_mov_b32 v5, s65"); A("v_mov_b32 v6, s67")
    A(f"s_waitcnt vmcnt({W})")
    A("s_mov_b64 exec, 1")
    g.vmem(f"global_store_dword v5, v6, s[26:27] offset:{OFF_FL} sc1", "flpub", optional=True)
    exec_all()
    g.label("L_nofl")
    A("v_and_b32 v13, 1, v2"); A("v_lshlrev_b32 v13, 4, v13"); A("v_mov_b32 v14, 0xffff"); A("v_lshlrev_b32 v14, v13, v14")
    A("v_lshrrev_b32 v13, 1, v2")
    for r in range(4):
        A(f"v_cmp_eq_u32 vcc, {r}, v13"); A(f"v_cndmask_b32 v{MK+r}, 0, v14, vcc")
    A("v_bfe_u32 v13, v0, 4, 1"); A("v_lshlrev_b32 v13, 4, v13"); A(f"v_lshl_add_u32 v{vCOL}, v2, 5, v13")
    A("s_mov_b32 s98, 0x00ff00ff"); A("s_mov_b32 s99, 0xff00ff00")
    A(f"v_lshlrev_b32 v{vL16}, 4, v0")
    A("v_lshrrev_b32 v13, 5, v0"); A(f"v_lshl_add_u32 v{vSLOT}, v13, 8, v{vCOL}")
    A(f"v_and_b32 v{vRC4}, 15, v0"); A(f"v_lshl_add_u32 v{vRC4}, v{vRC4}, 2, v13")
    A("v_bfe_u32 v13, v0, 4, 1"); A(f"v_lshl_add_u32 v{vRC4}, v13, 1, v{vRC4}"); A(f"v_lshlrev_b32 v{vRC4}, 2, v{vRC4}")
    A("s_lshl_b32 s66, s50, 6"); A("s_add_u32 s66, s66, s48"); A(f"s_mul_i32 s66, s66, {RS}")
    A("s_cmp_ge_u32 s2, 160"); A("s_cbranch_scc1 L_role_mlp")
    A("s_cmp_ge_u32 s49, 10"); A("s_cselect_b32 s60, 1, 0")
    A("s_mul_i32 s61, s60, 10"); A("s_sub_u32 s61, s49, s61")
    A("s_lshl_b32 s62, s48, 2"); A("s_lshl_b32 s63, s60, 1"); A("s_add_u32 s62, s62, s63")
    A("s_mul_i32 s62, s62, 192"); A("s_mul_i32 s63, s3, 24"); A("s_add_u32 s62, s62, s63")
    A("s_mul_i32 s56, s62, 1280"); A("s_lshl_b32 s63, s61, 7"); A("s_add_u32 s56, s56, s63")
    A("s_add_u32 s57, s56, 10240"); A("s_add_u32 s58, s56, 20480"); A(f"s_mov_b32 s59, {OOB}")
    srd(40, 12, 7864320); srd(44, 12, 7864320)
    A(f"v_mul_u32_u24 v{vXO}, 1280, v1"); A(f"v_lshl_add_u32 v{vXO}, v2, 4, v{vXO}")
    A("s_branch L_role_done")
    g.label("L_role_mlp")
    A("s_mul_i32 s60, s48, 12"); A("s_add_u32 s60, s60, s49"); A("s_sub_u32 s60, s60, 20")
    A("s_cmp_ge_u32 s3, 10"); A("s_cbranch_scc1 L_role_down")
    A("s_mul_i32 s56, s3, %d" % (64 * 3072)); A("s_lshl_b32 s61, s60, 5"); A("s_add_u32 s56, s56, s61")
    A("s_add_u32 s57, s56, %d" % (32 * 3072)); A("s_mov_b32 s58, s56"); A("s_mov_b32 s59, s57")
    srd(40, 16, 1966080); srd(44, 18, 1966080)
    A(f"v_lshrrev_b32 v13, 1, v0"); A("v_and_b32 v14, 1, v0")
    A(f"v_mul_u32_u24 v{vXO}, 3072, v13"); A(f"v_lshl_add_u32 v{vXO}, v14, 4, v{vXO}")
    A("s_branch L_role_done")
    g.label("L_role_down")
    A("s_mul_i32 s56, s60, %d" % (16 * 1280)); A("s_sub_u32 s61, s3, 10"); A("s_lshl_b32 s61, s61, 8"); A("s_add_u32 s56, s56, s61")
    A("s_cmp_eq_u32 s3, 15"); A(f"s_cselect_b32 s56, {OOB}, s56")
    A("s_add_u32 s57, s56, 10240"); A("s_add_u32 s58, s56, 128"); A("s_add_u32 s59, s56, 10368")
    srd(40, 20, 1966080); srd(44, 20, 1966080)
    A(f"v_mul_u32_u24 v{vXO}, 1280, v1"); A(f"v_lshl_add_u32 v{vXO}, v2, 4, v{vXO}")
    g.label("L_role_done")
    A("s_cmp_eq_u32 s3, 15"); A("s_cbranch_scc1 L_noq")
    g.wait("xs", keep=True)
    vals = []
    for i in range(5):
        A(f"v_lshlrev_b32 v{AC+2*i}, 16, v{5+i}"); A(f"v_and_b32 v{AC+2*i+1}, 0xffff0000, v{5+i}")
        vals += [AC + 2 * i, AC + 2 * i + 1]
    ln_stats(vals, 5, 6, 7, 8, 60)
    ln_apply([11, 12], 5, 6)
    buildB(BM, 11); buildB(BM + 4, 12)
    g.wait("wq", keep=True)
    stamp(1)
    mfma(AC, BM, X0, True); mfma(AC, BM + 4, X0 + 4, False)
    A("s_mul_i32 s61, s3, 171"); A("s_lshr_b32 s61, s61, 9"); A("s_lshl_b32 s61, s61, 9")
    A("s_mul_i32 s62, s68, 3072"); A("s_add_u32 s61, s61, s62"); A(f"v_add_u32 v5, s61, v{vSLOT}")
    exec_valid(); slot_write(AC, L_QS, 5); exec_all()
    g.label("L_noq")
    A("s_waitcnt lgkmcnt(0)")
    A("s_barrier")
    A("s_cmp_ge_u32 s3, 3"); A("s_cbranch_scc1 L_noqpub")
    A("s_mul_i32 s61, s3, 3072"); A(f"v_add_u32 v6, s61, v{vL16}")
    A("s_lshl_b32 s61, s3, 8"); A("s_add_u32 s61, s61, s65"); A(f"v_add_u32 v5, s61, v{vRC4}")
    A(f"v_mul_u32_u24 v{Q0+1}, {8*RS}, v2"); A(f"v_add_u32 v{Q0+1}, s66, v{Q0+1}")
    slot_sum(3, L_QS, 6, AC)
    g.vmem(f"global_store_dword v5, v{AC}, s[26:27] offset:{OFF_QP} sc1", "qpub", optional=True)
    def issue_gf(first=False):
        t = f"global_load_dword v{Q0}, v{Q0+1}, s[26:27] offset:{OFF_FL} sc1"
        if first: g.vmem(t, "gflags", optional=True)
        else: A(t)
    def check_gf(): A(f"v_cmp_ne_u32 vcc, s67, v{Q0}")
    issue_gf(True)
    g.label("L_noqpub")
    stamp(2)
    while len(issued) < 6: issue_next()
    A("s_cmp_ge_u32 s3, 3"); A("s_cbranch_scc1 L_noqpoll")
    g.wait("gflags", keep=True)
    check_gf()
    A("s_cbranch_vccz L_gf_ok")
    poll_loop("gf", issue_gf, check_gf)
    A("v_lshrrev_b32 v5, 4, v0"); A(f"v_mul_u32_u24 v5, {8*RS}, v5"); A("v_and_b32 v6, 15, v0"); A("v_lshl_add_u32 v5, v6, 4, v5")
    A("s_lshl_b32 s61, s3, 8"); A("s_add_u32 s61, s61, s66"); A(f"v_add_u32 v{Q0}, s61, v5")
    A(f"v_add_u32 v{Q0+1}, {4*8*RS}, v{Q0}")
    def issue_q(first=False):
        for k in range(2):
            s = f"global_load_dwordx4 v[{AC+4*k}:{AC+4*k+3}], v{Q0+k}, s[26:27] offset:{OFF_QP} sc1"
            if first: g.vmem(s, "qpoll", optional=True)
            else: A(s)
    def check_q(): sentinel_check(range(AC, AC + 8), 5)
    issue_q(True)
    g.label("L_noqpoll")
    for _ in range(W): issue_next()
    A("s_cmp_ge_u32 s3, 3"); A("s_cbranch_scc1 L_noqfin")
    g.wait("qpoll", keep=True)
    check_q()
    A("s_cbranch_vccz L_q_ok")
    poll_loop("q", issue_q, check_q)
    for r in range(4): A(f"v_add_f32 v{AC+r}, v{AC+r}, v{AC+4+r}")
    red4_rows(AC)
    A(f"v_cvt_pk_bf16_f32 v{AC}, v{AC}, v{AC}")
    A(f"v_lshrrev_b32 v5, 1, v{vRC4}")
    A("s_lshl_b32 s61, s3, 7"); A("v_add_u32 v5, s61, v5")
    A(f"ds_write_b16 v5, v{AC} offset:{L_QB}")
    g.label("L_noqfin")
    A("s_waitcnt lgkmcnt(0)")
    A("s_barrier")
    A("v_lshlrev_b32 v5, 4, v2")
    for s in range(3): A(f"ds_read_b128 v[{Q0+4*s}:{Q0+4*s+3}], v5 offset:{L_QB + s*128}")
    g.wait("K5")
    stamp(3)
    A("s_waitcnt lgkmcnt(0)")
    for i in range(12):
        for gi, acc in ((0, vS0), (1, vS1)):
            c = "0" if i == 0 else f"v{acc}"
            A(f"v_dot2_f32_bf16 v{acc}, v{K0+12*gi+i}, v{Q0+i}, {c}")
    red8([vS0, vS1])
    A(f"v_cvt_pk_bf16_f32 v5, v{vS0}, v{vS1}")
    A(f"v_lshlrev_b32 v{vS0}, 16, v5"); A(f"v_and_b32 v{vS1}, 0xffff0000, v5")
    A(f"v_mul_f32 v{vS0}, 0x3d93cd3a, v{vS0}"); A(f"v_mul_f32 v{vS1}, 0x3d93cd3a, v{vS1}")
    A(f"v_cvt_pk_bf16_f32 v5, v{vS0}, v{vS1}")
    A(f"v_lshlrev_b32 v{vS0}, 16, v5"); A(f"v_and_b32 v{vS1}, 0xffff0000, v5")
    A(f"v_max_f32 v5, v{vS0}, v{vS1}")
    wave_red("v_max_f32", 5, 60, full=False)
    A(f"v_subrev_f32 v5, s60, v{vS0}"); A(f"v_subrev_f32 v6, s60, v{vS1}")
    A(f"v_mul_f32 v5, {LOG2E:#x}, v5"); A(f"v_mul_f32 v6, {LOG2E:#x}, v6")
    A("v_exp_f32 v5, v5"); A("v_exp_f32 v6, v6")
    A("v_add_f32 v5, v5, v6")
    wave_red("v_add_f32", 5, 61, full=False)
    A("v_mov_b32 v6, s60"); A("v_mov_b32 v7, s61")
    A("s_lshl_b32 s62, s3, 3"); A("v_mov_b32 v5, s62")
    A(f"ds_write_b64 v5, v[6:7] offset:{L_ML}")
    A("s_waitcnt lgkmcnt(0)")
    A("s_barrier")
    def combine_ml(vm, vl, steps, t0, t1):
        A(f"v_mov_b32 v{t0}, v{vm}")
        for m in steps: dpp("v_max_f32", t0, t0, t0, m)
        A(f"v_sub_f32 v{t1}, v{vm}, v{t0}"); A(f"v_mul_f32 v{t1}, {LOG2E:#x}, v{t1}"); A(f"v_exp_f32 v{t1}, v{t1}")
        A(f"v_mul_f32 v{t1}, v{t1}, v{vl}")
        for m in steps: dpp("v_add_f32", t1, t1, t1, m)
    S8 = ["quad_perm:[1,0,3,2]", "quad_perm:[2,3,0,1]", "row_half_mirror"]
    A("s_cmp_lg_u32 s3, 0"); A("s_cbranch_scc1 L_nomlpub")
    A("v_and_b32 v5, 15, v0"); A("v_lshlrev_b32 v5, 3, v5")
    A(f"ds_read_b64 v[8:9], v5 offset:{L_ML}")
    A("v_mov_b32 v5, s65")
    A("s_waitcnt lgkmcnt(0)")
    combine_ml(8, 9, S8 + ["row_mirror"], 6, 7)
    A("s_mov_b64 exec, 1")
    g.vmem(f"global_store_dwordx2 v5, v[6:7], s[26:27] offset:{OFF_ML} sc1", "mlpub", optional=True)
    exec_all()
    g.label("L_nomlpub")
    stamp(4)
    while len(issued) < 6 + 4: issue_next()
    A("s_cmp_lg_u32 s3, 0"); A("s_cbranch_scc1 L_nomlpoll")
    A(f"v_mul_u32_u24 v{K0}, {8*RS}, v2"); A(f"v_add_u32 v{K0}, s66, v{K0}")
    A(f"v_mul_u32_u24 v{K0+1}, {RS}, v0")
    for i in range(1, 4): A(f"v_add_u32 v{K0+1+i}, {64*RS*i}, v{K0+1}")
    def issue_ml(first=False):
        ss = [f"global_load_dwordx2 v[{K0+6}:{K0+7}], v{K0}, s[26:27] offset:{OFF_ML} sc1"]
        ss += [f"global_load_dword v{K0+8+i}, v{K0+1+i}, s[26:27] offset:{OFF_FL} sc1" for i in range(4)]
        for s in ss:
            if first: g.vmem(s, "mlpoll", optional=True)
            else: A(s)
    def check_ml():
        for i in range(4): A(f"v_xor_b32 v{K0+8+i}, s67, v{K0+8+i}")
        A(f"v_or3_b32 v{K0+8}, v{K0+8}, v{K0+9}, v{K0+10}"); A(f"v_or_b32 v{K0+8}, v{K0+8}, v{K0+11}")
        A(f"v_max_u32 v5, v{K0+6}, v{K0+7}")
        A(f"v_cmp_ne_u32 s[60:61], 0, v{K0+8}")
        A("v_cmp_eq_u32 vcc, -1, v5")
        A("s_or_b64 vcc, vcc, s[60:61]")
    issue_ml(True)
    g.label("L_nomlpoll")
    while len(issued) < 12: issue_next()
    A("s_cmp_lg_u32 s3, 0"); A("s_cbranch_scc1 L_nomlfin")
    g.wait("mlpoll", keep=True)
    check_ml()
    A("s_cbranch_vccz L_ml_ok")
    poll_loop("ml", issue_ml, check_ml)
    combine_ml(K0 + 6, K0 + 7, S8, 6, 7)
    A("v_rcp_f32 v7, v7")
    A("v_mov_b32 v5, 0")
    A(f"ds_write_b64 v5, v[6:7] offset:{L_MF}")
    g.label("L_nomlfin")
    A("s_waitcnt lgkmcnt(0)")
    A("s_barrier")
    A("v_mov_b32 v5, 0")
    A(f"ds_read_b64 v[6:7], v5 offset:{L_MF}")
    stamp(5)
    A("s_waitcnt lgkmcnt(0)")
    A(f"v_sub_f32 v8, v{vS0}, v6"); A(f"v_sub_f32 v9, v{vS1}, v6")
    A(f"v_mul_f32 v8, {LOG2E:#x}, v8"); A(f"v_mul_f32 v9, {LOG2E:#x}, v9")
    A("v_exp_f32 v8, v8"); A("v_exp_f32 v9, v9")
    A("v_mul_f32 v8, v8, v7"); A("v_mul_f32 v9, v9, v7")
    A("v_cvt_pk_bf16_f32 v8, v8, v8"); A("v_cvt_pk_bf16_f32 v9, v9, v9")
    buildB(BM, 8); buildB(BM + 4, 9)
    A("s_lshl_b32 s61, s3, 9"); A(f"v_add_u32 v10, s61, v{vSLOT}")
    for s in range(3):
        g.wait(f"V{s}")
        mfma(AC + 4 * s, BM, V0 + 4 * s, True)
    for s in range(3):
        g.wait(f"V{3+s}")
        if len(issued) < 12 + xearly: issue_next(throttle=False)
        mfma(AC + 4 * s, BM + 4, V0 + 12 + 4 * s, False)
        if s == 2: stamp(6)
        exec_valid(); slot_write(AC + 4 * s, L_OS + 8192 * s, 10); exec_all()
    A("s_waitcnt lgkmcnt(0)")
    A("s_barrier")
    A("s_cmp_ge_u32 s3, 3"); A("s_cbranch_scc1 L_noopub")
    A("s_lshl_b32 s61, s3, 13"); A(f"v_add_u32 v6, s61, v{vL16}")
    A("s_lshl_b32 s61, s3, 8"); A("s_add_u32 s61, s61, s65"); A(f"v_add_u32 v5, s61, v{vRC4}")
    slot_sum(8, L_OS, 6, K0)
    g.vmem(f"global_store_dword v5, v{K0}, s[26:27] offset:{OFF_OP} sc1", "opub", optional=True)
    g.label("L_noopub")
    while len(issued) < 16: issue_next(throttle=False)
    stamp(7)
    A("s_cmp_ge_u32 s2, 160"); A("s_cbranch_scc1 L_mlp")
    A("s_cmp_ge_u32 s49, 10"); A("s_cselect_b32 s60, 2, 0"); A("s_lshr_b32 s61, s3, 3"); A("s_add_u32 s60, s60, s61")
    A("s_lshl_b32 s60, s60, 6"); A("s_add_u32 s60, s60, s48"); A(f"s_mul_i32 s60, s60, {RS}")
    A("s_and_b32 s61, s3, 7"); A("s_mul_i32 s61, s61, 96"); A("s_add_u32 s60, s60, s61")
    A(f"v_mul_u32_u24 v14, {8*RS}, v2"); A("v_lshl_add_u32 v14, v1, 2, v14"); A("v_add_u32 v14, s60, v14")
    A("s_lshl_b32 s61, s3, 9"); A(f"v_add_u32 v7, s61, v{vSLOT}")
    def issue_o():
        for i in range(3): A(f"global_load_dword v{8+i}, v14, s[26:27] offset:{OFF_OP + 32*i} sc1")
    poll_loop("o", issue_o, lambda: sentinel_check(range(8, 11), 5))
    stamp(8)
    red8([8, 9, 10])
    for i in range(3): A(f"v_cvt_pk_bf16_f32 v{8+i}, v{8+i}, v{8+i}")
    for i in range(3):
        buildB(Q0 + 4 * i, 8 + i)
    for i in range(3): mfma(AC, Q0 + 4 * i, X0 + 4 * i, i == 0)
    exec_valid(); slot_write(AC, L_WS, 7); exec_all()
    A("s_waitcnt lgkmcnt(0)")
    stamp(9)
    A("s_barrier")
    A("s_cmp_lg_u32 s3, 0"); A("s_cbranch_scc1 L_exit")
    A(f"v_add_u32 v5, s65, v{vRC4}")
    slot_sum(8, L_WS, vL16, K0)
    A(f"global_store_dword v5, v{K0}, s[26:27] offset:{OFF_T} sc1")
    stamp(10)
    A("s_branch L_exit")
    g.label("L_mlp")
    A("s_cmp_eq_u32 s3, 15"); A("s_cbranch_scc1 L_exit")
    A("v_lshlrev_b32 v5, 4, v1"); A("v_lshl_add_u32 v5, v2, 7, v5")
    A("s_cmp_ge_u32 s3, 10"); A("s_cbranch_scc1 L_mlp_nh")
    HA = K0
    A("v_lshrrev_b32 v5, 5, v0"); A(f"v_mul_u32_u24 v{HA}, {RS}, v5")
    A("v_bfe_u32 v5, v0, 4, 1"); A(f"v_mul_u32_u24 v5, {80*RS}, v5"); A(f"v_add_u32 v{HA}, v{HA}, v5")
    A("v_and_b32 v5, 15, v0"); A(f"v_lshl_add_u32 v{HA}, v5, 4, v{HA}")
    A(f"s_mul_i32 s60, s3, {8*RS}"); A(f"v_add_u32 v{HA}, s60, v{HA}")
    for i in range(1, 4): A(f"v_add_u32 v{HA+i}, {2*RS*i}, v{HA}")
    A("s_lshl_b32 s61, s3, 8"); A(f"v_add_u32 v14, s61, v{vRC4}")
    A("v_lshrrev_b32 v5, 1, v14"); A("v_mov_b32 v10, 0")
    A("global_load_short_d16_hi v10, v5, s[4:5]")
    def issue_h():
        for i in range(4): A(f"global_load_dwordx4 v[{AC+4*i}:{AC+4*i+3}], v{HA+i}, s[26:27] offset:{OFF_T} sc1")
    poll_loop("h", issue_h, lambda: sentinel_check(range(AC, AC + 16), 5))
    stamp(8)
    for r in range(4):
        A(f"v_add_f32 v{AC+r}, v{AC+r}, v{AC+4+r}"); A(f"v_add_f32 v{AC+8+r}, v{AC+8+r}, v{AC+12+r}")
    for r in range(4): A(f"v_add_f32 v{AC+r}, v{AC+r}, v{AC+8+r}")
    red4_rows(AC)
    rne(AC, AC)
    A(f"v_add_f32 v{AC}, v{AC}, v10")
    rne(AC, AC)
    A(f"ds_write_b32 v14, v{AC} offset:{L_HB}")
    g.label("L_mlp_nh")
    A("s_waitcnt lgkmcnt(0)")
    A("s_barrier")
    stamp(9)
    A("s_cmp_ge_u32 s3, 10"); A("s_cbranch_scc1 L_mlp_ngu")
    for i in range(10): A(f"ds_read_b32 v{AC+i}, v4 offset:{L_HB + 256*i}")
    A("v_lshrrev_b32 v5, 1, v0"); A("v_lshlrev_b32 v5, 2, v5"); A("s_lshl_b32 s61, s3, 8"); A("v_add_u32 v5, s61, v5")
    A(f"ds_read_b32 v9, v5 offset:{L_HB}"); A(f"ds_read_b32 v10, v5 offset:{L_HB+128}")
    A("v_lshrrev_b32 v5, 5, v0"); A("v_and_b32 v6, 1, v0"); A("v_lshl_add_u32 v5, v5, 1, v6")
    A("v_bfe_u32 v6, v0, 2, 3"); A("v_lshl_add_u32 v5, v6, 2, v5"); A("v_lshlrev_b32 v5, 2, v5")
    A("s_lshl_b32 s61, s3, 7"); A("v_add_u32 v14, s61, v5")
    A("s_waitcnt lgkmcnt(0)")
    ln_stats(list(range(AC, AC + 10)), 5, 6, 7, 8, 60)
    ln_apply([9, 10], 5, 6)
    A("v_lshrrev_b32 v11, 16, v9"); A("v_and_b32 v9, 0xffff0000, v9")
    A("v_lshrrev_b32 v12, 16, v10"); A("v_and_b32 v10, 0xffff0000, v10")
    mac8(AC, X0, 11, 9, True); mac8(AC + 8, X0 + 8, 11, 9, True)
    mac8(AC, X0 + 4, 12, 10, False); mac8(AC + 8, X0 + 12, 12, 10, False)
    for i in range(8): A(f"v_permlane32_swap_b32 v{AC+i}, v{AC+i+8}")
    for i in range(8): A(f"v_add_f32 v{AC+i}, v{AC+i}, v{AC+i+8}")
    for i in range(4): A(f"v_permlane16_swap_b32 v{AC+i}, v{AC+i+4}")
    for i in range(4): A(f"v_add_f32 v{AC+i}, v{AC+i}, v{AC+i+4}")
    for i in range(2): dpp("v_add_f32", AC + 4 + i, AC + i, AC + i, "row_ror:8", bm="0x3")
    for i in range(2): dpp("v_add_f32", AC + 4 + i, AC + 2 + i, AC + 2 + i, "row_ror:8", bm="0xc")
    dpp("v_add_f32", AC, AC + 4, AC + 4, "row_ror:12", bm="0x5")
    dpp("v_add_f32", AC, AC + 5, AC + 5, "row_ror:4", bm="0xa")
    dpp("v_add_f32", AC, AC, AC, "quad_perm:[2,3,0,1]")
    A(f"ds_write_b32 v14, v{AC} offset:{L_GU}")
    g.label("L_mlp_ngu")
    A("s_waitcnt lgkmcnt(0)")
    A("s_barrier")
    stamp(10)
    A("s_cmp_lt_u32 s3, 10"); A("s_cbranch_scc1 L_mlp_red")
    A(f"ds_read_b128 v[{AC}:{AC+3}], v5 offset:{L_GU}"); A(f"ds_read_b128 v[{AC+4}:{AC+7}], v5 offset:{L_GU+1024}")
    A("s_sub_u32 s60, s3, 10"); A("s_lshl_b32 s60, s60, 9"); A("s_add_u32 s60, s60, s65")
    A("v_lshrrev_b32 v10, 5, v0"); A(f"v_lshl_add_u32 v10, v10, 8, v{vCOL}"); A("v_add_u32 v10, s60, v10")
    A("s_waitcnt lgkmcnt(0)")
    for r in range(4): A(f"v_add_f32 v{6+r}, v{AC+r}, v{AC+4+r}")
    red8([6, 7, 8, 9])
    for r in (6, 7, 8, 9): rne(r, r)
    for r in (6, 7): A(f"v_mul_f32 v{r}, 0xbfb8aa3b, v{r}")
    for r in (6, 7): A(f"v_exp_f32 v{r}, v{r}")
    for r in (6, 7): A(f"v_add_f32 v{r}, 1.0, v{r}")
    for r in (6, 7): A(f"v_rcp_f32 v{r}, v{r}")
    for r in (6, 7): rne(r, r)
    for r in (6, 7): A(f"v_mul_f32 v{r}, v{r}, v{r+2}")
    for r in (6, 7): A(f"v_cvt_pk_bf16_f32 v{r}, v{r}, v{r}")
    buildB(BM, 6); buildB(BM + 4, 7)
    A("s_waitcnt vmcnt(0)")
    mfma(AC, BM, X0, True); mfma(AC + 4, BM, X0 + 8, True)
    mfma(AC, BM + 4, X0 + 4, False); mfma(AC + 4, BM + 4, X0 + 12, False)
    for r in range(4): A(f"v_permlane32_swap_b32 v{AC+r}, v{AC+4+r}")
    for r in range(4): dpp("v_add_f32", AC + r, AC + 4 + r, AC + r, "row_ror:8")
    A("s_mov_b32 s60, 0x00ff00ff"); A("s_mov_b32 s61, 0x00ff00ff"); A("s_mov_b64 exec, s[60:61]")
    A(f"global_store_dwordx4 v10, v[{AC}:{AC+3}], s[26:27] offset:{OFF_T} sc1")
    exec_all()
    stamp(11)
    A("s_branch L_exit")
    g.label("L_mlp_red")
    A("s_cmp_lg_u32 s3, 0"); A("s_cbranch_scc1 L_exit")
    A("s_cmp_ge_u32 s2, 200"); A("s_cbranch_scc1 L_exit")
    A("s_sub_u32 s60, s2, 160")
    DA = K0
    A("v_lshrrev_b32 v5, 2, v0"); A(f"v_mul_u32_u24 v{DA}, {RS}, v5"); A("v_and_b32 v5, 3, v0"); A(f"v_lshl_add_u32 v{DA}, v5, 4, v{DA}")
    A("s_lshl_b32 s61, s60, 6"); A(f"s_add_u32 s61, s61, {160*RS}"); A(f"v_add_u32 v{DA}, s61, v{DA}")
    for i in range(1, 6): A(f"v_add_u32 v{DA+i}, {16*RS*i}, v{DA}")
    A("v_and_b32 v5, 3, v0"); A("v_lshlrev_b32 v5, 2, v5"); A("v_lshrrev_b32 v6, 5, v0"); A("v_add_u32 v5, v5, v6")
    A("v_bfe_u32 v6, v0, 4, 1"); A("v_lshl_add_u32 v5, v6, 1, v5")
    A("s_lshl_b32 s61, s60, 4"); A("v_add_u32 v14, s61, v5")
    A("v_lshlrev_b32 v5, 2, v14"); A(f"ds_read_b32 v10, v5 offset:{L_HB}")
    A("v_lshlrev_b32 v14, 1, v14")
    AC_ = AC; AC = V0
    def issue_d():
        for i in range(6): A(f"global_load_dwordx4 v[{AC+4*i}:{AC+4*i+3}], v{DA+i}, s[26:27] offset:{OFF_T} sc1")
    poll_loop("d", issue_d, lambda: sentinel_check(range(AC, AC + 24), 5))
    stamp(12)
    for r in range(4):
        A(f"v_add_f32 v{AC+r}, v{AC+r}, v{AC+4+r}"); A(f"v_add_f32 v{AC+8+r}, v{AC+8+r}, v{AC+12+r}"); A(f"v_add_f32 v{AC+16+r}, v{AC+16+r}, v{AC+20+r}")
    for r in range(4): A(f"v_add_f32 v{AC+r}, v{AC+r}, v{AC+8+r}")
    for r in range(4): A(f"v_add_f32 v{AC+r}, v{AC+r}, v{AC+16+r}")
    red4_rows(AC)
    dpp("v_add_f32", AC, AC, AC, "row_ror:8"); dpp("v_add_f32", AC, AC, AC, "row_ror:4")
    rne(AC, AC)
    A("s_waitcnt lgkmcnt(0)")
    A(f"v_add_f32 v{AC}, v{AC}, v10")
    A(f"v_cvt_pk_bf16_f32 v{AC}, v{AC}, v{AC}")
    A("s_mov_b32 s60, 0x000f000f"); A("s_mov_b32 s61, 0x000f000f")
    A("s_mov_b64 exec, s[60:61]")
    A(f"global_store_short v14, v{AC}, s[22:23]")
    exec_all()
    A("s_cmp_lg_u32 s2, 160"); A("s_cbranch_scc1 L_noep")
    A("v_mov_b32 v6, s67"); A("v_mov_b32 v5, 0")
    A("s_mov_b64 exec, 1")
    A("global_store_dword v5, v6, s[26:27] offset:-4096 sc1")
    exec_all()
    g.label("L_noep")
    stamp(13)
    g.label("L_exit")
    if stamps:
        A("s_waitcnt lgkmcnt(0)")
        A("s_lshl_b32 s60, s2, 4"); A("s_add_u32 s60, s60, s3"); A("s_lshl_b32 s60, s60, 6"); A(f"s_add_u32 s60, s60, {STAMP_BASE}")
        A("v_mov_b32 v5, s60")
        for k in range(NST):
            A(f"v_mov_b32 v6, s{70+2*k}")
            A(f"global_store_dword v5, v6, s[26:27] offset:{4*k}")
    g.label("L_end")
    A("s_endpgm")
    g.raw(".p2align 6")
    g.raw("L_code_end:")
    g.raw(f".set CODE_BYTES, L_code_end - {KN}")
    g.raw('.section .rodata,"a"'); g.raw(".p2align 6"); g.raw(f".amdhsa_kernel {KN}")
    g.raw("  .amdhsa_next_free_vgpr 128"); g.raw("  .amdhsa_next_free_sgpr 100"); g.raw("  .amdhsa_accum_offset 128")
    g.raw("  .amdhsa_group_segment_fixed_size 0"); g.raw("  .amdhsa_kernarg_size 96"); g.raw("  .amdhsa_user_sgpr_count 2")
    g.raw("  .amdhsa_user_sgpr_kernarg_segment_ptr 1"); g.raw("  .amdhsa_system_sgpr_workgroup_id_x 1"); g.raw(".end_amdhsa_kernel")
    return g.text()

if __name__ == "__main__":
    import argparse
    ap = argparse.ArgumentParser()
    ap.add_argument("-o", default="sequential_preLN__sliding_block_cached__glu_gated_glu__decode.s")
    ap.add_argument("-W", type=int, default=2)
    ap.add_argument("--stamps", action="store_true")
    a = ap.parse_args()
    open(a.o, "w").write(gen(W=a.W, stamps=a.stamps))
```

```python
import sys
sys.path.insert(0, "work")
from asmgen import Gen
KN = "sequential_preLN__sliding_block_cached__glu_gated_glu__decode_kernel"
RS = 7168
OFF_QP, OFF_OP, OFF_ML, OFF_FL, OFF_T, OFF_T2 = 0, 768, 1536, 1664, 2048, 4608
L_QB, L_ML, L_MF, L_WT, L_F1, L_F2 = 1024, 1408, 1536, 1600, 1552, 1556
L_HB = 1792
L_HN = 4352
L_QS = 5632
L_OS = 16384
L_WS = 40960
LDS_BYTES = 81920
OOB = 0x7ff00000
LOG2E = 0x3fb8aa3b
SPIN = 1 << 16
STAMP_BASE = 0x400000
NST = 14
NWAVES = 8
HEADER = open("sequential_preLN__sliding_block_cached__glu_gated_glu__decode.s.ref").read().split("; Override launch")[0]

vKV, vL4, vXO, vCOL = 3, 4, 13, 15
MK = 16
vRC4, vL16, vSLOT, vOPA, vT0, vT1 = 20, 21, 22, 23, 24, 25
Q0, SC, AC, K0, V0 = 28, 40, 48, 64, 160
BM = Q0
X0 = K0

def gen(W=6, stamps=False, nt="nt", sleep=0, early=False, mid=False, local=True, pre=False, vb=6, xa_h=0, xa_s=6, k0=3, b0=False):
    g = Gen(); A = g.A
    def stamp(k):
        if stamps and not ((early or mid) and k >= 8): A(f"s_memrealtime s[{70+2*k}:{71+2*k}]")
    def mstamp(k):
        if stamps and mid: A(f"s_memrealtime s[{70+2*k}:{71+2*k}]")
    def estamp(k):
        if stamps and early: A(f"s_memrealtime s[{70+2*k}:{71+2*k}]")
    def rne(dst, src):
        A(f"v_cvt_pk_bf16_f32 v{dst}, v{src}, v{src}")
        A(f"v_and_b32 v{dst}, 0xffff0000, v{dst}")
    def dpp(op, d, a, b, m, rm="0xf", bm="0xf"):
        A(f"{op}_dpp v{d}, v{a}, v{b} {m} row_mask:{rm} bank_mask:{bm}")
    S8 = ["quad_perm:[1,0,3,2]", "quad_perm:[2,3,0,1]", "row_half_mirror"]
    def wave_red(op, v, sdst, full=True):
        if full:
            for m in S8: dpp(op, v, v, v, m)
        dpp(op, v, v, v, "row_ror:8")
        dpp(op, v, v, v, "row_bcast:15", rm="0xa")
        dpp(op, v, v, v, "row_bcast:31", rm="0xc")
        A(f"v_readlane_b32 s{sdst}, v{v}, 63")
    def red8(vs, op="v_add_f32"):
        for m in S8:
            for v in vs: dpp(op, v, v, v, m)
    def buildB(dst, packed):
        for r in range(4): A(f"v_and_b32 v{dst+r}, v{packed}, v{MK+r}")
    def mfma(d, a, w, first):
        c = "0" if first else f"v[{d}:{d+3}]"
        A(f"v_mfma_f32_16x16x32_bf16 v[{d}:{d+3}], v[{a}:{a+3}], v[{w}:{w+3}], {c}")
    def exec_valid(): A("s_mov_b64 exec, s[98:99]")
    def exec_all(): A("s_mov_b64 exec, -1")
    def red4_rows(a):
        A(f"v_permlane32_swap_b32 v{a}, v{a+1}"); A(f"v_permlane32_swap_b32 v{a+2}, v{a+3}")
        A(f"v_add_f32 v{a}, v{a}, v{a+1}"); A(f"v_add_f32 v{a+2}, v{a+2}, v{a+3}")
        A(f"v_permlane16_swap_b32 v{a}, v{a+2}")
        A(f"v_add_f32 v{a}, v{a}, v{a+2}")
    def slot_write(d, off, addr):
        A(f"ds_write_b128 v{addr}, v[{d}:{d+3}] offset:{off}")
    def tree4(n, buf, waits=False):
        live = list(range(n)); first = True
        while len(live) > 1:
            nxt = []
            for a in range(0, len(live) - 1, 2):
                if first and waits: A(f"s_waitcnt lgkmcnt({n - 2 - a})")
                for r in range(4): A(f"v_add_f32 v{buf+4*live[a]+r}, v{buf+4*live[a]+r}, v{buf+4*live[a+1]+r}")
                nxt.append(live[a])
            if len(live) % 2:
                if first and waits: A("s_waitcnt lgkmcnt(0)")
                nxt.append(live[-1])
            live = nxt; first = False
    def slot_sum(n, off, addr, buf):
        for i in range(n): A(f"ds_read_b128 v[{buf+4*i}:{buf+4*i+3}], v{addr} offset:{off + 1024*i}")
        tree4(n, buf, True)
        red4_rows(buf)
    def ln_stats(vals, vmean, vrden, t0, t1, st):
        A(f"v_add_f32 v{t0}, v{vals[0]}, v{vals[1]}")
        A(f"v_add_f32 v{t1}, v{vals[2]}, v{vals[3]}")
        for i in range(4, len(vals), 2):
            A(f"v_add_f32 v{t0}, v{t0}, v{vals[i]}")
            A(f"v_add_f32 v{t1}, v{t1}, v{vals[i+1]}")
        A(f"v_add_f32 v{t0}, v{t0}, v{t1}")
        A(f"v_mov_b32 v{vmean}, 0x3acccccd")
        wave_red("v_add_f32", t0, st)
        A(f"v_mul_f32 v{vmean}, s{st}, v{vmean}")
        for v in vals: A(f"v_sub_f32 v{v}, v{v}, v{vmean}")
        A(f"v_mul_f32 v{t0}, v{vals[0]}, v{vals[0]}"); A(f"v_mul_f32 v{t1}, v{vals[1]}, v{vals[1]}")
        for i in range(2, len(vals), 2):
            A(f"v_fmac_f32 v{t0}, v{vals[i]}, v{vals[i]}"); A(f"v_fmac_f32 v{t1}, v{vals[i+1]}, v{vals[i+1]}")
        A(f"v_add_f32 v{t0}, v{t0}, v{t1}")
        A(f"v_mov_b32 v{t1}, 0x3acccccd")
        rne(vmean, vmean)
        wave_red("v_add_f32", t0, st)
        A(f"v_mul_f32 v{t0}, s{st}, v{t1}")
        rne(t0, t0)
        A(f"v_add_f32 v{t0}, 0x3727c5ac, v{t0}")
        rne(t0, t0)
        A(f"v_sqrt_f32 v{t0}, v{t0}")
        rne(t0, t0)
        A(f"v_rcp_f32 v{vrden}, v{t0}")
    def srd(d, b, n):
        A(f"s_mov_b32 s{d}, s{b}"); A(f"s_mov_b32 s{d+1}, s{b+1}"); A(f"s_mov_b32 s{d+2}, {n}"); A(f"s_mov_b32 s{d+3}, 0x20000")
    def sentinel_check(regs, t):
        rs = list(regs)
        if len(rs) == 1:
            A(f"v_cmp_eq_u32 vcc, -1, v{rs[0]}"); return
        if len(rs) == 2: A(f"v_max_u32 v{t}, v{rs[0]}, v{rs[1]}"); rs = []
        else: A(f"v_max3_u32 v{t}, v{rs[0]}, v{rs[1]}, v{rs[2]}"); rs = rs[3:]
        while rs:
            if len(rs) >= 2: A(f"v_max3_u32 v{t}, v{t}, v{rs[0]}, v{rs[1]}"); rs = rs[2:]
            else: A(f"v_max_u32 v{t}, v{t}, v{rs[0]}"); rs = rs[1:]
        A(f"v_cmp_eq_u32 vcc, -1, v{t}")
    def poll_loop(name, issue, check, slp=sleep):
        A("s_mov_b32 s69, 0")
        g.label(f"L_{name}")
        issue()
        A("s_waitcnt vmcnt(0)")
        check()
        A(f"s_cbranch_vccz L_{name}_ok")
        if slp: A(f"s_sleep {slp}")
        A("s_add_u32 s69, s69, 1")
        A(f"s_cmp_lt_u32 s69, {SPIN}")
        A(f"s_cbranch_scc1 L_{name}")
        g.label(f"L_{name}_ok")
    def poll_sel(name, items, t):
        for ld, _ in items: A(ld)
        A("s_mov_b32 s69, 0")
        g.label(f"L_{name}")
        A("s_waitcnt vmcnt(0)")
        A("s_mov_b32 s64, 0")
        for i, (ld, regs) in enumerate(items):
            sentinel_check(regs, t)
            A(f"s_cbranch_vccz L_{name}_s{i}")
            A(ld)
            A("s_mov_b32 s64, 1")
            g.label(f"L_{name}_s{i}")
        A("s_cmp_eq_u32 s64, 0"); A(f"s_cbranch_scc1 L_{name}_ok")
        if sleep: A(f"s_sleep {sleep}")
        A("s_add_u32 s69, s69, 1")
        A(f"s_cmp_lt_u32 s69, {SPIN}")
        A(f"s_cbranch_scc1 L_{name}")
        A("s_waitcnt vmcnt(0)")
        g.label(f"L_{name}_ok")
    lcnt = [0]
    def store_mode(txt):
        k = lcnt[0]; lcnt[0] += 1
        A("s_cmp_eq_u32 s50, 0"); A(f"s_cbranch_scc1 L_sg{k}")
        A(txt)
        A(f"s_branch L_se{k}")
        g.label(f"L_sg{k}")
        A(txt + " sc1")
        g.label(f"L_se{k}")
    def combine_ml(vm, vl, steps, t0, t1):
        A(f"v_mov_b32 v{t0}, v{vm}")
        for m in steps: dpp("v_max_f32", t0, t0, t0, m)
        A(f"v_sub_f32 v{t1}, v{vm}, v{t0}"); A(f"v_mul_f32 v{t1}, {LOG2E:#x}, v{t1}"); A(f"v_exp_f32 v{t1}, v{t1}")
        A(f"v_mul_f32 v{t1}, v{t1}, v{vl}")
        for m in steps: dpp("v_add_f32", t1, t1, t1, m)
    def ld_kv(nm, i):
        base = K0 if nm == "K" else V0
        sr = 28 if nm == "K" else 32
        grp, s = i // 3, i % 3
        off = s * 128
        so = 53
        if grp:
            A(f"s_add_u32 s64, s53, {grp*3072}"); so = 64
        g.vmem(f"buffer_load_dwordx4 v[{base+4*i}:{base+4*i+3}], v{vKV}, s[{sr}:{sr+3}], s{so} offen offset:{off} {nt}", f"{nm}{i}")
    def ld_x(i, sr, step, base=X0, s0=56):
        if i: A(f"s_add_u32 s64, s{s0}, {i*step}")
        g.vmem(f"buffer_load_dwordx4 v[{base+4*i}:{base+4*i+3}], v{vXO}, s[{sr}:{sr+3}], s{64 if i else s0} offen {nt}", f"X{i}")

    def lds_wait(name, off):
        A("v_mov_b32 v6, 0"); A("s_mov_b32 s69, 0")
        g.label(f"L_{name}")
        A(f"ds_read_b32 v7, v6 offset:{off}")
        A("s_waitcnt lgkmcnt(0)")
        A("v_cmp_eq_u32 vcc, s67, v7")
        A(f"s_cbranch_vccnz L_{name}_ok")
        A("s_sleep 1")
        A("s_add_u32 s69, s69, 1"); A(f"s_cmp_lt_u32 s69, {SPIN*16}"); A(f"s_cbranch_scc1 L_{name}")
        g.label(f"L_{name}_ok")
    def lds_set(off):
        A("v_mov_b32 v6, 0"); A("v_mov_b32 v7, s67")
        A(f"ds_write_b32 v6, v7 offset:{off}")
    g.raw(HEADER.rstrip("\n"))
    g.raw(f"; @launch grid=(256,1,1) block=(512,1,1) lds={LDS_BYTES}")
    g.raw('.amdgcn_target "amdgcn-amd-amdhsa--gfx950"')
    g.raw(".text"); g.raw(f".globl {KN}"); g.raw(".p2align 8"); g.raw(f".type {KN},@function"); g.raw(f"{KN}:")
    A("s_getpc_b64 s[62:63]")
    A("s_load_dwordx16 s[4:19], s[0:1], 0")
    A("s_load_dwordx8 s[20:27], s[0:1], 64")
    A("s_cmp_ge_u32 s2, 256"); A("s_cbranch_scc1 L_end")
    stamp(0)
    A("v_lshlrev_b32 v5, 4, v0")
    A("s_and_b32 s62, s62, 0xffffff00")
    A("v_lshrrev_b32 v4, 6, v0")
    A("v_add_u32 v6, 8192, v5")
    A("v_min_u32 v6, CODE_BYTES-16, v6")
    g.vmem(f"global_load_dwordx4 v[{AC}:{AC+3}], v5, s[62:63]", "pf")
    g.vmem(f"global_load_dwordx4 v[{AC+4}:{AC+7}], v6, s[62:63]", "pf")
    A("v_and_b32 v0, 63, v0")
    A("v_readfirstlane_b32 s3, v4")
    A("v_lshrrev_b32 v1, 3, v0")
    A("v_and_b32 v2, 7, v0")
    A("s_and_b32 s48, s2, 7"); A("s_lshr_b32 s49, s2, 3"); A("s_lshr_b32 s50, s49, 3"); A("s_and_b32 s51, s49, 7")
    A("s_lshl_b32 s52, s48, 2"); A("s_add_u32 s52, s52, s50")
    A("s_sub_u32 s68, s3, 4")
    A("s_cmp_lt_u32 s3, 4"); A("s_cbranch_scc1 L_st_s")
    A("s_cmp_eq_u32 s3, 7"); A("s_cbranch_scc1 L_st_7")
    XS = SC
    WQ = V0
    A("s_mul_i32 s54, s51, %d" % (80 * 12288)); A("s_mul_i32 s64, s52, 384"); A("s_add_u32 s54, s54, s64")
    A("s_lshl_b32 s64, s68, 7"); A("s_add_u32 s54, s54, s64")
    A("v_mul_u32_u24 v10, 24576, v1"); A("v_lshl_add_u32 v10, v2, 4, v10")
    A("v_mul_u32_u24 v9, 20, v0")
    A("s_mul_i32 s63, s51, 160"); A("v_lshl_add_u32 v14, v1, 2, s63")
    A("s_waitcnt lgkmcnt(0)")
    estamp(8)
    srd(36, 10, 7864320)
    A(f"global_load_dwordx4 v[{XS}:{XS+3}], v9, s[4:5]")
    A(f"global_load_dword v{XS+4}, v9, s[4:5] offset:16")
    for p in range(5): A(f"global_load_dword v{Q0+p}, v14, s[4:5] offset:{32*p}")
    for i in range(10):
        A(f"buffer_load_dwordx4 v[{WQ+4*i}:{WQ+4*i+3}], v10, s[36:39], s54 offen {nt}")
        if i < 9: A(f"s_add_u32 s54, s54, {12288 if i % 2 == 0 else 15*12288}")
    if b0: A("s_barrier")
    A("s_branch L_st_d")
    g.label("L_st_s")
    A("s_mul_i32 s53, s52, 3145728"); A("s_mul_i32 s60, s51, 98304"); A("s_add_u32 s53, s53, s60")
    A("s_mul_i32 s60, s3, 24576"); A("s_add_u32 s53, s53, s60"); A(f"s_add_u32 s53, s53, {6144*384}")
    A("v_mul_u32_u24 v3, 384, v1"); A("v_lshl_add_u32 v3, v2, 4, v3")
    A("s_waitcnt lgkmcnt(0)")
    estamp(8)
    srd(28, 6, 100663296)
    if b0: A("s_barrier")
    for i in range(k0): ld_kv("K", i)
    A("s_branch L_st_d")
    g.label("L_st_7")
    CL = K0
    A("s_mul_i32 s65, s2, %d" % RS)
    A("v_lshlrev_b32 v13, 4, v0")
    for r in range(CL, CL + 4): A(f"v_mov_b32 v{r}, -1")
    A("s_add_u32 s64, s65, 4096")
    A("v_add_u32 v11, s64, v13")
    A("s_waitcnt lgkmcnt(0)")
    for i in range(3): A(f"global_store_dwordx4 v11, v[{CL}:{CL+3}], s[26:27] offset:{i*1024} sc1")
    A("s_cmp_lt_u32 s2, 160"); A("s_cbranch_scc1 L_clr2")
    A(f"global_store_dwordx4 v11, v[{CL}:{CL+3}], s[26:27] offset:3072 sc1")
    A("v_add_u32 v11, 4096, v11")
    for i in range(3): A(f"global_store_dwordx4 v11, v[{CL}:{CL+3}], s[26:27] offset:{i*1024} sc1")
    g.label("L_clr2")
    if b0: A("s_barrier")
    g.label("L_st_d")
    estamp(9)
    A("s_load_dword s67, s[26:27], 0")
    A("s_mul_i32 s65, s2, %d" % RS)
    A("s_add_u32 s26, s26, 4096"); A("s_addc_u32 s27, s27, 0")
    A("v_lshlrev_b32 v4, 2, v0"); A(f"v_mov_b32 v{vOPA}, 0")
    A("v_and_b32 v13, 1, v2"); A("v_lshlrev_b32 v13, 4, v13"); A("v_mov_b32 v14, 0xffff"); A("v_lshlrev_b32 v14, v13, v14")
    A("v_lshrrev_b32 v13, 1, v2")
    for r in range(4):
        A(f"v_cmp_eq_u32 vcc, {r}, v13"); A(f"v_cndmask_b32 v{MK+r}, 0, v14, vcc")
    A("v_bfe_u32 v13, v0, 4, 1"); A("v_lshlrev_b32 v13, 4, v13"); A(f"v_lshl_add_u32 v{vCOL}, v2, 5, v13")
    A("s_mov_b32 s98, 0x00ff00ff"); A("s_mov_b32 s99, 0xff00ff00")
    A(f"v_lshlrev_b32 v{vL16}, 4, v0")
    A("v_lshrrev_b32 v13, 5, v0"); A(f"v_lshl_add_u32 v{vSLOT}, v13, 8, v{vCOL}")
    A(f"v_and_b32 v{vRC4}, 15, v0"); A(f"v_lshl_add_u32 v{vRC4}, v{vRC4}, 2, v13")
    A("v_bfe_u32 v13, v0, 4, 1"); A(f"v_lshl_add_u32 v{vRC4}, v13, 1, v{vRC4}"); A(f"v_lshlrev_b32 v{vRC4}, 2, v{vRC4}")
    A("s_lshl_b32 s66, s50, 6"); A("s_add_u32 s66, s66, s48"); A(f"s_mul_i32 s66, s66, {RS}")
    A("s_waitcnt lgkmcnt(0)")
    A("s_add_u32 s67, s67, 1")
    A("s_cmp_lt_u32 s3, 4"); A("s_cbranch_scc1 L_noqp")
    A("s_cmp_lg_u32 s3, 7"); A("s_cbranch_scc1 L_nofl")
    A("s_getreg_b32 s60, hwreg(HW_REG_XCC_ID)")
    A("v_mov_b32 v5, s65"); A("v_mov_b32 v6, s67"); A("v_mov_b32 v7, s60")
    A("s_waitcnt vmcnt(0)")
    A("s_mov_b64 exec, 1")
    A(f"global_store_dwordx2 v5, v[6:7], s[26:27] offset:{OFF_FL} sc1")
    exec_all()
    lds_set(L_F1)
    A("s_branch L_noqp")
    g.label("L_nofl")
    A("s_waitcnt vmcnt(10)")
    estamp(12)
    vals = []
    for i in range(5):
        A(f"v_lshlrev_b32 v{AC+2*i}, 16, v{XS+i}"); A(f"v_and_b32 v{AC+2*i+1}, 0xffff0000, v{XS+i}")
        vals += [AC + 2 * i, AC + 2 * i + 1]
    MU = [K0 + i for i in range(10)]
    for p in range(5):
        A(f"v_lshlrev_b32 v{MU[2*p]}, 16, v{Q0+p}"); A(f"v_and_b32 v{MU[2*p+1]}, 0xffff0000, v{Q0+p}")
    ln_stats(vals, 5, 6, 7, 8, 60)
    for v in MU: A(f"v_sub_f32 v{v}, v{v}, v5")
    for v in MU: rne(v, v)
    for v in MU: A(f"v_mul_f32 v{v}, v{v}, v6")
    for v in MU: A(f"v_cvt_pk_bf16_f32 v{v}, v{v}, v{v}")
    QB = [K0 + 12 + 4 * i for i in range(10)]
    for v, d in zip(MU, QB): buildB(d, v)
    A("v_lshrrev_b32 v5, 5, v0"); A(f"v_lshl_add_u32 v5, v5, 3, v{vCOL}")
    A("s_lshl_b32 s61, s68, 8"); A("s_add_u32 s61, s61, s65"); A("v_add_u32 v5, s61, v5")
    lds_wait("f1", L_F1)
    A("s_mov_b32 s60, 0x00ff00ff"); A("s_mov_b32 s61, 0x00ff00ff")
    estamp(13)
    for i in range(10):
        A(f"s_waitcnt vmcnt({9-i})")
        mfma(AC, QB[i], WQ + 4 * i, i == 0)
    stamp(1)
    A(f"v_permlane32_swap_b32 v{AC}, v{AC+2}"); A(f"v_permlane32_swap_b32 v{AC+1}, v{AC+3}")
    dpp("v_add_f32", AC, AC + 2, AC, "row_ror:8"); dpp("v_add_f32", AC + 1, AC + 3, AC + 1, "row_ror:8")
    A("s_mov_b64 exec, s[60:61]")
    A(f"global_store_dwordx2 v5, v[{AC}:{AC+1}], s[26:27] offset:{OFF_QP} sc1")
    exec_all()
    stamp(2)
    g.label("L_noqp")
    A("s_mov_b32 s36, s4"); A("s_mov_b32 s37, s5")
    A("s_cmp_ge_u32 s2, 160"); A("s_cbranch_scc1 L_role_mlp")
    A("s_cmp_ge_u32 s49, 10"); A("s_cselect_b32 s60, 1, 0")
    A("s_mul_i32 s61, s60, 10"); A("s_sub_u32 s61, s49, s61")
    A("s_lshl_b32 s62, s48, 2"); A("s_lshl_b32 s63, s60, 1"); A("s_add_u32 s62, s62, s63")
    A("s_mul_i32 s62, s62, 192"); A("s_mul_i32 s63, s3, 48"); A("s_add_u32 s62, s62, s63")
    A("s_mul_i32 s56, s62, 1280"); A("s_lshl_b32 s63, s61, 7"); A("s_add_u32 s56, s56, s63")
    srd(40, 12, 7864320); srd(44, 12, 7864320)
    A(f"v_mul_u32_u24 v{vXO}, 1280, v1"); A(f"v_lshl_add_u32 v{vXO}, v2, 4, v{vXO}")
    A("s_branch L_role_done")
    g.label("L_role_mlp")
    A("s_mul_i32 s60, s48, 12"); A("s_add_u32 s60, s60, s49"); A("s_sub_u32 s60, s60, 20")
    A("s_and_b32 s61, s60, 3"); A("s_mul_i32 s56, s61, %d" % (160 * 3072)); A("s_and_b32 s61, s3, 3"); A("s_mul_i32 s61, s61, %d" % (40 * 3072)); A("s_add_u32 s56, s56, s61")
    A("s_lshr_b32 s61, s60, 2"); A("s_lshl_b32 s61, s61, 7"); A("s_add_u32 s56, s56, s61")
    A("s_cmp_ge_u32 s3, 4"); A("s_cselect_b32 s40, s18, s16"); A("s_cselect_b32 s41, s19, s17")
    A("s_mov_b32 s42, 1966080"); A("s_mov_b32 s43, 0x20000")
    srd(44, 20, 1966080)
    A("s_mul_i32 s57, s60, %d" % (16 * 1280)); A("s_lshl_b32 s61, s3, 8"); A("s_add_u32 s57, s57, s61")
    A(f"v_mul_u32_u24 v{vXO}, 3072, v1"); A(f"v_lshl_add_u32 v{vXO}, v2, 4, v{vXO}")
    g.label("L_role_done")
    A("s_cmp_ge_u32 s3, 4"); A("s_cbranch_scc1 L_helper")

    g.vm = [[f"K{i}", False] for i in range(k0)]
    srd(28, 6, 100663296); srd(32, 8, 100663296)
    A("v_mul_u32_u24 v3, 384, v1"); A("v_lshl_add_u32 v3, v2, 4, v3")
    seq = [("K", i) for i in range(24)] + [("V", i) for i in range(24)]
    n = [k0]
    def nxt(throttle=True):
        if n[0] >= 48: return
        if throttle and n[0] >= W:
            pn, pi = seq[n[0] - W]; g.wait(f"{pn}{pi}")
        ld_kv(*seq[n[0]]); n[0] += 1
    g.wait("K0", keep=True); g.vm.insert(0, ["K0", False])
    while n[0] < 24 + vb: nxt()
    mstamp(10)
    A("s_barrier")
    A("v_lshlrev_b32 v5, 4, v2")
    for s in range(3): A(f"ds_read_b128 v[{Q0+4*s}:{Q0+4*s+3}], v5 offset:{L_QB + s*128}")
    stamp(3)
    A("s_waitcnt lgkmcnt(0)")
    for gp in range(4):
        if gp == 3:
            while n[0] < 24 + W: nxt()
        elif gp and n[0] < 24 + W: nxt()
        g.wait(f"K{6*gp+5}")
        for i in range(12):
            for gi in (2 * gp, 2 * gp + 1):
                c = "0" if i == 0 else f"v{SC+gi}"
                A(f"v_dot2_f32_bf16 v{SC+gi}, v{K0+12*gi+i}, v{Q0+i}, {c}")
    red8([SC + i for i in range(8)])
    for p in range(4): A(f"v_cvt_pk_bf16_f32 v{5+p}, v{SC+2*p}, v{SC+2*p+1}")
    for p in range(4): A(f"v_lshlrev_b32 v{SC+2*p}, 16, v{5+p}"); A(f"v_and_b32 v{SC+2*p+1}, 0xffff0000, v{5+p}")
    for i in range(8): A(f"v_mul_f32 v{SC+i}, 0x3d93cd3a, v{SC+i}")
    for p in range(4): A(f"v_cvt_pk_bf16_f32 v{5+p}, v{SC+2*p}, v{SC+2*p+1}")
    for p in range(4): A(f"v_lshlrev_b32 v{SC+2*p}, 16, v{5+p}"); A(f"v_and_b32 v{SC+2*p+1}, 0xffff0000, v{5+p}")
    A(f"v_max3_f32 v5, v{SC}, v{SC+1}, v{SC+2}"); A(f"v_max3_f32 v6, v{SC+3}, v{SC+4}, v{SC+5}")
    A(f"v_max3_f32 v5, v5, v{SC+6}, v{SC+7}"); A("v_max_f32 v5, v5, v6")
    wave_red("v_max_f32", 5, 60, full=False)
    for i in range(8): A(f"v_subrev_f32 v{SC+i}, s60, v{SC+i}")
    for i in range(8): A(f"v_mul_f32 v{SC+i}, {LOG2E:#x}, v{SC+i}")
    for i in range(8): A(f"v_exp_f32 v{SC+i}, v{SC+i}")
    for i in range(4): A(f"v_add_f32 v{AC+i}, v{SC+i}, v{SC+4+i}")
    A(f"v_add_f32 v{AC}, v{AC}, v{AC+1}"); A(f"v_add_f32 v{AC+2}, v{AC+2}, v{AC+3}"); A(f"v_add_f32 v5, v{AC}, v{AC+2}")
    wave_red("v_add_f32", 5, 61, full=False)
    A("v_mov_b32 v6, s60"); A("v_mov_b32 v7, s61")
    A("s_lshl_b32 s62, s3, 3"); A("v_mov_b32 v5, s62")
    A(f"ds_write_b64 v5, v[6:7] offset:{L_ML}")
    for i in range(8): A(f"v_cvt_pk_bf16_f32 v{SC+i}, v{SC+i}, v{SC+i}")
    A("s_lshl_b32 s61, s3, 9"); A(f"v_add_u32 v10, s61, v{vSLOT}")
    A("s_waitcnt lgkmcnt(0)")
    A("s_barrier")
    stamp(4)
    vm_s = [list(e) for e in g.vm]; n_s = n[0]
    def s_tail(R):
        g.vm = [list(e) for e in vm_s]; n[0] = n_s
        xi = 0
        for gi in range(8):
            bm = BM + 4 * (gi % 3)
            buildB(bm, SC + gi)
            for s in range(3):
                g.wait(f"V{3*gi+s}")
                while n[0] < 48 and n[0] - W <= 24 + 3 * gi + s: nxt()
                if R == "A" and 3 * gi + s >= 24 - W and xi < xa_s:
                    ld_x(xi, 40, 10240); xi += 1
                mfma(AC + 4 * s, bm, V0 + 12 * gi + 4 * s, gi == 0)
                if gi == 7:
                    if s == 2: stamp(6)
                    exec_valid(); slot_write(AC + 4 * s, L_OS + 2048 * s, 10); exec_all()
        A("s_waitcnt lgkmcnt(0)")
        A("s_barrier")
        return xi
    A("s_cmp_ge_u32 s2, 160"); A("s_cbranch_scc1 L_sB")
    xi = s_tail("A")
    for i in range(xi, 6): ld_x(i, 40, 10240)
    A("s_branch L_wo")
    g.label("L_sB")
    s_tail("B")
    A("s_branch L_mlp")

    g.label("L_helper")
    g.vm = []
    A("s_cmp_eq_u32 s3, 7"); A("s_cbranch_scc1 L_h_noq")
    A(f"v_lshrrev_b32 v13, 2, v{vRC4}") if False else None
    A(f"v_lshrrev_b32 v9, 2, v{vRC4}"); A("s_lshl_b32 s60, s68, 6"); A("v_add_u32 v9, s60, v9")
    A("v_mul_u32_u24 v14, 171, v9"); A("v_lshrrev_b32 v14, 12, v14")
    A("v_mul_u32_u24 v5, 24, v14"); A("v_sub_u32 v9, v9, v5")
    A(f"v_mul_u32_u24 v14, {8*RS}, v14"); A("v_lshl_add_u32 v14, v9, 5, v14")
    A("s_lshl_b32 s60, s51, 2"); A("s_add_u32 s60, s60, s66"); A(f"v_add_u32 v{vOPA}, s60, v14")
    lds_wait("f2", L_F2)
    mstamp(8)
    A("v_lshrrev_b32 v5, 4, v0"); A(f"v_mul_u32_u24 v5, {8*RS}, v5"); A("v_and_b32 v6, 15, v0"); A("v_lshl_add_u32 v5, v6, 4, v5")
    A("s_lshl_b32 s61, s68, 8"); A("s_add_u32 s61, s61, s66"); A(f"v_add_u32 v{Q0}, s61, v5")
    A(f"v_add_u32 v{Q0+1}, {4*8*RS}, v{Q0}")
    poll_sel("q", [(f"global_load_dwordx4 v[{AC+4*k}:{AC+4*k+3}], v{Q0+k}, s[26:27] offset:{OFF_QP} sc1", range(AC + 4 * k, AC + 4 * k + 4)) for k in range(2)], 5)
    mstamp(12)
    for r in range(4): A(f"v_add_f32 v{AC+r}, v{AC+r}, v{AC+4+r}")
    red4_rows(AC)
    A(f"v_cvt_pk_bf16_f32 v{AC}, v{AC}, v{AC}")
    A(f"v_lshrrev_b32 v5, 1, v{vRC4}")
    A("s_lshl_b32 s61, s68, 7"); A("v_add_u32 v5, s61, v5")
    A(f"ds_write_b16 v5, v{AC} offset:{L_QB}")
    A("s_branch L_h_b2")
    g.label("L_h_noq")
    FA, FD = Q0, AC
    A(f"v_mul_u32_u24 v{FA}, {RS}, v0")
    for i in range(1, 4): A(f"v_add_u32 v{FA+i}, {64*RS*i}, v{FA}")
    def issue_af():
        for i in range(4): A(f"global_load_dwordx2 v[{FD+2*i}:{FD+2*i+1}], v{FA+i}, s[26:27] offset:{OFF_FL} sc1")
    def check_af():
        for i in range(4): A(f"v_xor_b32 v{FD+8+i}, s67, v{FD+2*i}")
        A(f"v_or3_b32 v{FD+8}, v{FD+8}, v{FD+9}, v{FD+10}"); A(f"v_or_b32 v{FD+8}, v{FD+8}, v{FD+11}")
        A(f"v_max3_u32 v5, v{FD+1}, v{FD+3}, v{FD+5}"); A(f"v_max_u32 v5, v5, v{FD+7}")
        A(f"v_cmp_ne_u32 vcc, 0, v{FD+8}")
        A("v_cmp_eq_u32 s[60:61], -1, v5")
        A("s_or_b64 vcc, vcc, s[60:61]")
    A(f"v_mul_u32_u24 v9, {8*RS}, v2"); A("v_add_u32 v9, s66, v9")
    poll_loop("gf", lambda: A(f"global_load_dword v8, v9, s[26:27] offset:{OFF_FL} sc1"), lambda: A("v_cmp_ne_u32 vcc, s67, v8"), slp=4)
    lds_set(L_F2)
    A("s_sleep 16")
    poll_loop("af", issue_af, check_af, slp=16)
    A("s_getreg_b32 s62, hwreg(HW_REG_XCC_ID)")
    for i in range(4): A(f"v_xor_b32 v{FD+8+i}, s62, v{FD+1+2*i}")
    A(f"v_or3_b32 v{FD+8}, v{FD+8}, v{FD+9}, v{FD+10}"); A(f"v_or_b32 v{FD+8}, v{FD+8}, v{FD+11}")
    A(f"v_cmp_ne_u32 vcc, 0, v{FD+8}")
    A("v_cmp_eq_u32 s[60:61], s48, v2")
    A("s_and_b64 vcc, vcc, s[60:61]")
    A("s_cmp_eq_u64 vcc, 0"); A(f"s_cselect_b32 s50, {1 if local else 0}, 0")
    A("v_mov_b32 v5, 0"); A("v_mov_b32 v6, s50")
    A(f"ds_write_b32 v5, v6 offset:{L_MF}")
    g.label("L_h_b2")
    A("s_waitcnt lgkmcnt(0)")
    A("s_barrier")
    A("s_barrier")
    A("v_and_b32 v5, 3, v0"); A("v_lshlrev_b32 v5, 3, v5")
    A(f"ds_read_b64 v[8:9], v5 offset:{L_ML}")
    A("v_lshrrev_b32 v5, 5, v0"); A("v_lshlrev_b32 v5, 3, v5")
    A(f"ds_read_b32 v10, v5 offset:{L_ML}"); A(f"ds_read_b32 v11, v5 offset:{L_ML+16}")
    A("v_mov_b32 v5, 0"); A(f"ds_read_b32 v12, v5 offset:{L_MF}")
    A("v_mov_b32 v5, s65")
    A("s_waitcnt lgkmcnt(0)")
    A("v_readfirstlane_b32 s50, v12")
    combine_ml(8, 9, S8[:2], 6, 7)
    A("s_cmp_lg_u32 s3, 7"); A("s_cbranch_scc1 L_h_noml")
    A("s_mov_b64 exec, 1")
    A(f"global_store_dwordx2 v5, v[6:7], s[26:27] offset:{OFF_ML} sc1")
    exec_all()
    stamp(4)
    g.label("L_h_noml")
    for v in (10, 11): A(f"v_sub_f32 v{v}, v{v}, v6")
    for v in (10, 11): A(f"v_mul_f32 v{v}, {LOG2E:#x}, v{v}")
    for v in (10, 11): A(f"v_exp_f32 v{v}, v{v}")
    A("s_cmp_ge_u32 s2, 160"); A("s_cbranch_scc1 L_h_nox")
    if xa_h: A(f"s_sleep {xa_h}")
    for i in range(6): ld_x(i, 40, 10240)
    A("s_cmp_lg_u32 s3, 7"); A("s_cbranch_scc1 L_h_nox")
    A("s_cmp_ge_u32 s49, 10"); A("s_cselect_b32 s60, 2, 0")
    A("s_lshl_b32 s60, s60, 6"); A("s_add_u32 s60, s60, s48"); A(f"s_mul_i32 s60, s60, {RS}")
    A("v_and_b32 v12, 15, v0"); A(f"v_mul_u32_u24 v10, {8*RS}, v12"); A("v_add_u32 v10, s60, v10")
    poll_loop("wml", lambda: A(f"global_load_dwordx2 v[8:9], v10, s[26:27] offset:{OFF_ML} sc1"), lambda: sentinel_check([8, 9], 5), slp=8)
    A("v_mov_b32 v6, v8")
    for m in S8: dpp("v_max_f32", 6, 6, 6, m)
    A("v_sub_f32 v8, v8, v6"); A(f"v_mul_f32 v8, {LOG2E:#x}, v8"); A("v_exp_f32 v8, v8")
    A("v_mul_f32 v7, v8, v9")
    for m in S8: dpp("v_add_f32", 7, 7, 7, m)
    A("v_rcp_f32 v7, v7")
    A("v_mul_f32 v10, v8, v7")
    A("v_lshlrev_b32 v12, 2, v12")
    A(f"ds_write_b32 v12, v10 offset:{L_WT}")
    A("s_waitcnt lgkmcnt(0)")
    mstamp(13)
    g.label("L_h_nox")
    A("s_lshl_b32 s61, s68, 11"); A(f"v_add_u32 v6, s61, v{vL16}")
    A("s_barrier")
    A("s_cmp_eq_u32 s3, 7"); A("s_cbranch_scc1 L_h_noop")
    A(f"ds_read_b128 v[{AC}:{AC+3}], v6 offset:{L_OS}"); A(f"ds_read_b128 v[{AC+4}:{AC+7}], v6 offset:{L_OS+1024}")
    A("s_waitcnt lgkmcnt(1)")
    for r in range(4): A(f"v_mul_f32 v{AC+r}, v{AC+r}, v10")
    A("s_waitcnt lgkmcnt(0)")
    for r in range(4): A(f"v_fmac_f32 v{AC+r}, v{AC+4+r}, v11")
    red4_rows(AC)
    store_mode(f"global_store_dword v{vOPA}, v{AC}, s[26:27] offset:{OFF_OP}")
    stamp(7)
    g.label("L_h_noop")
    A("s_cmp_ge_u32 s2, 160"); A("s_cbranch_scc1 L_mlp")

    g.label("L_wo")
    A("s_cmp_ge_u32 s49, 10"); A("s_cselect_b32 s60, 2, 0"); A("s_lshr_b32 s61, s3, 2"); A("s_add_u32 s60, s60, s61")
    A("s_lshl_b32 s60, s60, 3"); A("s_and_b32 s61, s3, 3"); A("s_lshl_b32 s61, s61, 1"); A("s_add_u32 s60, s60, s61"); A("s_lshl_b32 s60, s60, 3")
    A("s_add_u32 s60, s60, s48"); A(f"s_mul_i32 s60, s60, {RS}")
    A("v_add_u32 v14, s60, v4"); A(f"v_add_u32 v12, {8*RS}, v14")
    A("s_lshl_b32 s61, s3, 9"); A(f"v_add_u32 v11, s61, v{vSLOT}")
    OD = SC
    A("s_lshr_b32 s61, s3, 2"); A("s_lshl_b32 s61, s61, 5"); A("v_lshl_add_u32 v10, v2, 2, s61")
    A(f"ds_read_b32 v10, v10 offset:{L_WT}")
    def issue_o():
        for i in range(6): A(f"global_load_dword v{OD+i}, v{14 if i < 3 else 12}, s[26:27] offset:{OFF_OP + 256*(i%3)} sc1")
    poll_loop("o", issue_o, lambda: sentinel_check(range(OD, OD + 6), 5))
    stamp(8)
    A("s_waitcnt lgkmcnt(0)")
    for i in range(6): A(f"v_mul_f32 v{OD+i}, v{OD+i}, v10")
    red8([OD + i for i in range(6)])
    for i in range(6): A(f"v_cvt_pk_bf16_f32 v{OD+i}, v{OD+i}, v{OD+i}")
    for i in range(6):
        bm = BM + 4 * (i % 3)
        buildB(bm, OD + i)
        mfma(AC, bm, X0 + 4 * i, i == 0)
    exec_valid(); slot_write(AC, L_WS, 11); exec_all()
    A("s_waitcnt lgkmcnt(0)")
    stamp(9)
    A("s_barrier")
    A("s_cmp_lg_u32 s3, 0"); A("s_cbranch_scc1 L_exit")
    A(f"v_add_u32 v5, s65, v{vRC4}")
    slot_sum(4, L_WS, vL16, AC)
    A(f"global_store_dword v5, v{AC}, s[26:27] offset:{OFF_T} sc1")
    stamp(10)
    A("s_branch L_exit")

    g.label("L_mlp")
    A("s_barrier")
    for i in range(5): ld_x(i, 40, 8 * 3072)
    DW = V0
    A("s_cmp_ge_u32 s3, 5"); A("s_cbranch_scc1 L_m_nodown")
    A("v_mul_u32_u24 v12, 1280, v1"); A("v_lshl_add_u32 v12, v2, 4, v12")
    for i, off in enumerate((0, 10240, 128, 10368)):
        A(f"s_add_u32 s64, s57, {off}")
        A(f"buffer_load_dwordx4 v[{DW+4*i}:{DW+4*i+3}], v12, s[44:47], s64 offen {nt}")
    g.label("L_m_nodown")
    A("s_mul_i32 s61, s3, 5120"); A(f"v_add_u32 v6, s61, v{vL16}")
    A("s_cmp_ge_u32 s3, 5"); A("s_cbranch_scc1 L_m_w5")
    A("s_waitcnt vmcnt(4)"); A("s_branch L_m_w5d")
    g.label("L_m_w5"); A("s_waitcnt vmcnt(0)")
    g.label("L_m_w5d")
    for i in range(5): A(f"ds_write_b128 v6, v[{X0+4*i}:{X0+4*i+3}] offset:{L_WS + i*1024}")
    A("s_waitcnt lgkmcnt(0)")
    A("s_barrier")
    stamp(9)
    A("s_cmp_ge_u32 s3, 6"); A("s_cbranch_scc1 L_exit")
    A("s_cmp_eq_u32 s3, 5"); A("s_cbranch_scc1 L_fin")
    A("v_lshrrev_b32 v5, 4, v0"); A("v_bfe_u32 v6, v0, 2, 2"); A("v_lshl_add_u32 v5, v5, 3, v6"); A("v_lshlrev_b32 v5, 7, v5")
    A("v_and_b32 v6, 3, v0"); A("v_lshl_add_u32 v5, v6, 3, v5")
    A("s_lshl_b32 s61, s3, 12"); A("v_add_u32 v5, s61, v5")
    A("s_sub_u32 s63, s49, 20"); A("s_and_b32 s63, s63, 3")
    A("v_mov_b32 v6, 0"); A(f"ds_read_b32 v6, v6 offset:{L_MF}"); A("s_waitcnt lgkmcnt(0)"); A("v_readfirstlane_b32 s50, v6")
    BF = K0
    for m in range(2):
        for cg in range(4):
            tI = m * 4 + cg
            A(f"ds_read_b64_tr_b16 v[{BF+4*tI}:{BF+4*tI+1}], v5 offset:{L_WS + m*20480 + cg*32}")
            A(f"ds_read_b64_tr_b16 v[{BF+4*tI+2}:{BF+4*tI+3}], v5 offset:{L_WS + m*20480 + cg*32 + 512}")
    AF = K0 + 32
    for r in range(16): A(f"v_mov_b32 v{AF+r}, 0")
    A("s_mul_i32 s60, s63, 160"); A("s_lshl_b32 s61, s3, 5"); A("s_add_u32 s60, s60, s61")
    A("v_and_b32 v9, 31, v0"); A("v_add_u32 v6, s60, v9"); A(f"v_lshlrev_b32 v{vT0}, 2, v6")
    A("v_lshlrev_b32 v10, 1, v9"); A("s_lshl_b32 s61, s3, 6"); A("v_add_u32 v10, s61, v10")
    A("v_lshrrev_b32 v11, 4, v0"); A("v_lshlrev_b32 v11, 4, v11"); A("v_add_u32 v11, s61, v11")
    A("v_lshrrev_b32 v12, 4, v0"); A("v_lshlrev_b32 v12, 7, v12"); A("v_lshl_add_u32 v12, v2, 4, v12")
    A("v_bfe_u32 v6, v0, 3, 1"); A("v_lshl_add_u32 v12, v6, 3, v12")
    A("s_lshl_b32 s60, s3, 9"); A("s_add_u32 s60, s60, s65"); A(f"s_add_u32 s61, s60, {OFF_T2}"); A("v_add_u32 v12, s61, v12")
    A(f"v_add_u32 v14, s60, v{vSLOT}")
    A(f"s_mul_i32 s60, s63, {8*RS}"); A("s_sub_u32 s60, s65, s60"); A("s_lshl_b32 s61, s63, 7"); A("s_add_u32 s60, s60, s61"); A(f"s_add_u32 s60, s60, {OFF_T2}")
    GA = K0 + 48
    for t in range(3):
        A(f"v_add_u32 v6, {8*t}, v2"); A("v_min_u32 v6, 19, v6")
        A("v_mul_u32_u24 v7, 52, v6"); A("v_lshrrev_b32 v7, 8, v7")
        A("v_mul_u32_u24 v8, 5, v7"); A("v_sub_u32 v8, v6, v8")
        A(f"v_mul_u32_u24 v7, {8*RS}, v7"); A("v_lshl_add_u32 v7, v8, 9, v7"); A("v_lshl_add_u32 v7, v1, 4, v7")
        A(f"v_add_u32 v{GA+t}, s60, v7")
    A("v_cmp_gt_u32 vcc, 4, v2"); A(f"v_cndmask_b32 v{GA+3}, 0, 1.0, vcc")
    HA = K0 + 52; HD = V0 + 16
    A("v_lshrrev_b32 v5, 5, v0"); A(f"v_mul_u32_u24 v{HA}, {RS}, v5")
    A("v_bfe_u32 v5, v0, 4, 1"); A(f"v_mul_u32_u24 v5, {80*RS}, v5"); A(f"v_add_u32 v{HA}, v{HA}, v5")
    A("v_and_b32 v5, 15, v0"); A(f"v_lshl_add_u32 v{HA}, v5, 4, v{HA}")
    A(f"s_mul_i32 s60, s3, {16*RS}"); A(f"v_add_u32 v{HA}, s60, v{HA}")
    for i in range(1, 8): A(f"v_add_u32 v{HA+i}, {2*RS*(i%4) + 8*RS*(i//4)}, v{HA}")
    A("s_lshl_b32 s61, s3, 9"); A(f"v_add_u32 v{vT1}, s61, v{vRC4}")
    A(f"v_lshrrev_b32 v5, 1, v{vT1}"); A(f"v_mov_b32 v{SC}, 0"); A(f"v_mov_b32 v{SC+1}, 0")
    A(f"global_load_short_d16_hi v{SC}, v5, s[36:37]"); A(f"global_load_short_d16_hi v{SC+1}, v5, s[36:37] offset:128")
    A("v_lshlrev_b32 v4, 3, v0")
    if pre:
        for t in range(3): A(f"global_load_dwordx4 v[{AC+4*t}:{AC+4*t+3}], v{GA+t}, s[26:27] sc1")
    poll_sel("h", [(f"global_load_dwordx4 v[{HD+4*i}:{HD+4*i+3}], v{HA+i}, s[26:27] offset:{OFF_T} sc1", range(HD + 4 * i, HD + 4 * i + 4)) for i in range(8)], 5)
    stamp(8)
    for b in range(2): tree4(4, HD + 16 * b)
    for b in range(2): red4_rows(HD + 16 * b)
    for b in range(2): rne(HD + 16 * b, HD + 16 * b)
    for b in range(2): A(f"v_add_f32 v{HD+16*b}, v{HD+16*b}, v{SC+b}")
    for b in range(2): rne(HD + 16 * b, HD + 16 * b)
    for b in range(2): A(f"ds_write_b32 v{vT1}, v{HD+16*b} offset:{L_HB + 256*b}")
    A("s_waitcnt lgkmcnt(0)")
    A("s_barrier")
    stamp(10)
    A(f"ds_read_b128 v[{AC}:{AC+3}], v{vL16} offset:{L_HB}"); A(f"ds_read_b128 v[{AC+4}:{AC+7}], v{vL16} offset:{L_HB+1024}")
    A(f"ds_read_b64 v[{AC+8}:{AC+9}], v4 offset:{L_HB+2048}")
    A(f"ds_read_b32 v{AC+10}, v{vT0} offset:{L_HB}")
    A("s_waitcnt lgkmcnt(0)")
    ln_stats(list(range(AC, AC + 10)), 5, 6, 7, 8, 64)
    A(f"v_sub_f32 v{AC+10}, v{AC+10}, v5")
    rne(AC + 10, AC + 10)
    A(f"v_mul_f32 v{AC+10}, v{AC+10}, v6")
    A(f"v_cvt_pk_bf16_f32 v7, v{AC+10}, v{AC+10}")
    A(f"ds_write_b16 v10, v7 offset:{L_HN}")
    for cg in range(4):
        mk = 0x000f000f << (4 * cg)
        A(f"s_mov_b32 exec_lo, {mk:#x}"); A(f"s_mov_b32 exec_hi, {mk:#x}")
        A(f"ds_read_b128 v[{AF+4*cg}:{AF+4*cg+3}], v11 offset:{L_HN}")
    exec_all()
    for cg in range(4):
        A(f"s_waitcnt lgkmcnt({3-cg})")
        mfma(AC, AF + 4 * cg, BF + 4 * cg, cg == 0)
        mfma(AC + 4, AF + 4 * cg, BF + 16 + 4 * cg, cg == 0)
    A(f"v_mov_b32 v{AC+1}, v{AC+4}")
    store_mode(f"global_store_dwordx2 v12, v[{AC}:{AC+1}], s[26:27]")
    stamp(11)
    GD = HD
    poll_sel("gu", [(f"global_load_dwordx4 v[{GD+4*t}:{GD+4*t+3}], v{GA+t}, s[26:27] sc1", range(GD + 4 * t, GD + 4 * t + 4)) for t in range(3)], 5)
    stamp(12)
    G0 = AC
    for r, dst in enumerate((G0, G0 + 2, G0 + 1, G0 + 3)):
        A(f"v_add_f32 v{dst}, v{GD+r}, v{GD+4+r}")
    for r, dst in enumerate((G0, G0 + 2, G0 + 1, G0 + 3)):
        A(f"v_fmac_f32 v{dst}, v{GD+8+r}, v{GA+3}")
    red8([G0, G0 + 1, G0 + 2, G0 + 3])
    for r in range(4): rne(G0 + r, G0 + r)
    for r in (G0, G0 + 1): A(f"v_mul_f32 v{r}, 0xbfb8aa3b, v{r}")
    for r in (G0, G0 + 1): A(f"v_exp_f32 v{r}, v{r}")
    for r in (G0, G0 + 1): A(f"v_add_f32 v{r}, 1.0, v{r}")
    for r in (G0, G0 + 1): A(f"v_rcp_f32 v{r}, v{r}")
    for r in (G0, G0 + 1): rne(r, r)
    for r in (G0, G0 + 1): A(f"v_mul_f32 v{r}, v{r}, v{r+2}")
    for r in (G0, G0 + 1): A(f"v_cvt_pk_bf16_f32 v{r}, v{r}, v{r}")
    buildB(BM, G0); buildB(BM + 4, G0 + 1)
    D0 = AC + 4
    mfma(D0, BM, DW, True); mfma(D0 + 4, BM, DW + 8, True)
    mfma(D0, BM + 4, DW + 4, False); mfma(D0 + 4, BM + 4, DW + 12, False)
    A("s_mov_b32 s60, 0x00ff00ff"); A("s_mov_b32 s61, 0x00ff00ff")
    for r in range(4): A(f"v_permlane32_swap_b32 v{D0+r}, v{D0+4+r}")
    for r in range(4): dpp("v_add_f32", D0 + r, D0 + 4 + r, D0 + r, "row_ror:8")
    A("s_mov_b64 exec, s[60:61]")
    A(f"global_store_dwordx4 v14, v[{D0}:{D0+3}], s[26:27] offset:{OFF_T} sc1")
    exec_all()
    stamp(13)
    A("s_branch L_exit")
    g.label("L_fin")
    A("s_sub_u32 s60, s2, 160")
    DA, DD = Q0, K0
    A("v_lshrrev_b32 v5, 2, v0"); A(f"v_mul_u32_u24 v{DA}, {RS}, v5"); A("v_and_b32 v5, 3, v0"); A(f"v_lshl_add_u32 v{DA}, v5, 4, v{DA}")
    A("s_min_u32 s62, s60, 39")
    A("s_lshl_b32 s61, s62, 6"); A(f"s_add_u32 s61, s61, {160*RS}"); A(f"v_add_u32 v{DA}, s61, v{DA}")
    for i in range(1, 6): A(f"v_add_u32 v{DA+i}, {16*RS*i}, v{DA}")
    A(f"v_and_b32 v5, 63, v{vRC4}")
    A("s_lshl_b32 s61, s62, 6"); A("v_add_u32 v14, s61, v5")
    A("s_cmp_ge_u32 s2, 200"); A("s_cbranch_scc1 L_exit")
    A("s_barrier")
    A(f"ds_read_b32 v10, v14 offset:{L_HB}")
    A("v_lshrrev_b32 v14, 1, v14")
    poll_sel("d", [(f"global_load_dwordx4 v[{DD+4*i}:{DD+4*i+3}], v{DA+i}, s[26:27] offset:{OFF_T} sc1", range(DD + 4 * i, DD + 4 * i + 4)) for i in range(6)], 5)
    stamp(12)
    tree4(6, DD)
    red4_rows(DD)
    dpp("v_add_f32", DD, DD, DD, "row_ror:8"); dpp("v_add_f32", DD, DD, DD, "row_ror:4")
    rne(DD, DD)
    A("s_waitcnt lgkmcnt(0)")
    A(f"v_add_f32 v{DD}, v{DD}, v10")
    A(f"v_cvt_pk_bf16_f32 v{DD}, v{DD}, v{DD}")
    A("s_mov_b32 s60, 0x000f000f"); A("s_mov_b32 s61, 0x000f000f")
    A("s_mov_b64 exec, s[60:61]")
    A(f"global_store_short v14, v{DD}, s[22:23]")
    exec_all()
    A("s_cmp_lg_u32 s2, 160"); A("s_cbranch_scc1 L_noep")
    A("v_mov_b32 v6, s67"); A("v_mov_b32 v5, 0")
    A("s_mov_b64 exec, 1")
    A("global_store_dword v5, v6, s[26:27] offset:-4096 sc1")
    exec_all()
    g.label("L_noep")
    stamp(13)
    g.label("L_exit")
    if stamps:
        A("s_waitcnt lgkmcnt(0)")
        A("s_lshl_b32 s60, s2, 4"); A("s_add_u32 s60, s60, s3"); A("s_lshl_b32 s60, s60, 6"); A(f"s_add_u32 s60, s60, {STAMP_BASE}")
        A("v_mov_b32 v5, s60")
        for k in range(NST):
            A(f"v_mov_b32 v6, s{70+2*k}")
            A(f"global_store_dword v5, v6, s[26:27] offset:{4*k}")
    g.label("L_end")
    A("s_endpgm")
    g.raw(".p2align 6")
    g.raw("L_code_end:")
    g.raw(f".set CODE_BYTES, L_code_end - {KN}")
    g.raw('.section .rodata,"a"'); g.raw(".p2align 6"); g.raw(f".amdhsa_kernel {KN}")
    g.raw("  .amdhsa_next_free_vgpr 256"); g.raw("  .amdhsa_next_free_sgpr 100"); g.raw("  .amdhsa_accum_offset 256")
    g.raw("  .amdhsa_group_segment_fixed_size 0"); g.raw("  .amdhsa_kernarg_size 96"); g.raw("  .amdhsa_user_sgpr_count 2")
    g.raw("  .amdhsa_user_sgpr_kernarg_segment_ptr 1"); g.raw("  .amdhsa_system_sgpr_workgroup_id_x 1"); g.raw(".end_amdhsa_kernel")
    return g.text()

if __name__ == "__main__":
    import argparse, json
    ap = argparse.ArgumentParser()
    ap.add_argument("-o", default="sequential_preLN__sliding_block_cached__glu_gated_glu__decode.s")
    ap.add_argument("--cfg", default="{}")
    a = ap.parse_args()
    open(a.o, "w").write(gen(**json.loads(a.cfg)))
```

```python
import sys
sys.path.insert(0, "work")
from asmgen import Gen
KN = "sequential_preLN__sliding_block_cached__glu_gated_glu__decode_kernel"
OFF_QP, OFF_OP, OFF_ML, OFF_FL, OFF_T, OFF_T2 = 0, 768, 1536, 1664, 2048, 4608
L_QB, L_ML, L_MF = 1024, 1408, 1536
L_HB = 1792
L_HN = 14848
L_QS = 5632
L_OS = 16384
L_WS = 22528
LDS_BYTES = 65536
OOB = 0x7ff00000
LOG2E = 0x3fb8aa3b
SPIN = 1 << 16
STAMP_BASE = 0x400000
NST = 14
NWAVES = 8
HEADER = open("sequential_preLN__sliding_block_cached__glu_gated_glu__decode.s.ref").read().split("; Override launch")[0]

vKV, vL4, vXO, vCOL = 3, 4, 13, 15
MK = 16
vRC4, vL16, vSLOT, vOPA, vT0, vT1, vC2 = 20, 21, 22, 23, 24, 25, 26
Q0, SC, AC, K0, V0 = 28, 40, 48, 64, 160
BM = Q0
X0 = K0

def gen(W=6, stamps=False, nt="nt", sleep=0, early=False, mid=False, local=True, pre=True, vb=6, xa_h=0, xa_s=6, k0=3, SI=5248, SCM=33, asy="ohgd", cap=12, aslp=1, fbar=True, xdel=0, W2=0, lm=True, repl=True, mlslp=0):
    g = Gen(); A = g.A
    SCL = SCM * SI if SCM else SI // 8
    def stamp(k):
        if stamps and not ((early or mid) and k >= 8): A(f"s_memrealtime s[{70+2*k}:{71+2*k}]")
    def mstamp(k):
        if stamps and mid: A(f"s_memrealtime s[{70+2*k}:{71+2*k}]")
    def estamp(k):
        if stamps and early: A(f"s_memrealtime s[{70+2*k}:{71+2*k}]")
    def rne(dst, src):
        A(f"v_cvt_pk_bf16_f32 v{dst}, v{src}, v{src}")
        A(f"v_and_b32 v{dst}, 0xffff0000, v{dst}")
    def dpp(op, d, a, b, m, rm="0xf", bm="0xf"):
        A(f"{op}_dpp v{d}, v{a}, v{b} {m} row_mask:{rm} bank_mask:{bm}")
    S8 = ["quad_perm:[1,0,3,2]", "quad_perm:[2,3,0,1]", "row_half_mirror"]
    def wave_red(op, v, sdst, full=True):
        if full:
            for m in S8: dpp(op, v, v, v, m)
        dpp(op, v, v, v, "row_ror:8")
        dpp(op, v, v, v, "row_bcast:15", rm="0xa")
        dpp(op, v, v, v, "row_bcast:31", rm="0xc")
        A(f"v_readlane_b32 s{sdst}, v{v}, 63")
    def red8(vs, op="v_add_f32"):
        for m in S8:
            for v in vs: dpp(op, v, v, v, m)
    def buildB(dst, packed):
        for r in range(4): A(f"v_and_b32 v{dst+r}, v{packed}, v{MK+r}")
    def mfma(d, a, w, first):
        c = "0" if first else f"v[{d}:{d+3}]"
        A(f"v_mfma_f32_16x16x32_bf16 v[{d}:{d+3}], v[{a}:{a+3}], v[{w}:{w+3}], {c}")
    def exec_valid(): A("s_mov_b64 exec, s[98:99]")
    def exec_all(): A("s_mov_b64 exec, -1")
    def red4_rows(a):
        A(f"v_permlane32_swap_b32 v{a}, v{a+1}"); A(f"v_permlane32_swap_b32 v{a+2}, v{a+3}")
        A(f"v_add_f32 v{a}, v{a}, v{a+1}"); A(f"v_add_f32 v{a+2}, v{a+2}, v{a+3}")
        A(f"v_permlane16_swap_b32 v{a}, v{a+2}")
        A(f"v_add_f32 v{a}, v{a}, v{a+2}")
    def slot_write(d, off, addr):
        A(f"ds_write_b128 v{addr}, v[{d}:{d+3}] offset:{off}")
    def tree4(n, buf, waits=False):
        live = list(range(n)); first = True
        while len(live) > 1:
            nxt = []
            for a in range(0, len(live) - 1, 2):
                if first and waits: A(f"s_waitcnt lgkmcnt({n - 2 - a})")
                for r in range(4): A(f"v_add_f32 v{buf+4*live[a]+r}, v{buf+4*live[a]+r}, v{buf+4*live[a+1]+r}")
                nxt.append(live[a])
            if len(live) % 2:
                if first and waits: A("s_waitcnt lgkmcnt(0)")
                nxt.append(live[-1])
            live = nxt; first = False
    def slot_sum(n, off, addr, buf):
        for i in range(n): A(f"ds_read_b128 v[{buf+4*i}:{buf+4*i+3}], v{addr} offset:{off + 1024*i}")
        tree4(n, buf, True)
        red4_rows(buf)
    def ln_stats(vals, vmean, vrden, t0, t1, st):
        A(f"v_add_f32 v{t0}, v{vals[0]}, v{vals[1]}")
        A(f"v_add_f32 v{t1}, v{vals[2]}, v{vals[3]}")
        for i in range(4, len(vals), 2):
            A(f"v_add_f32 v{t0}, v{t0}, v{vals[i]}")
            A(f"v_add_f32 v{t1}, v{t1}, v{vals[i+1]}")
        A(f"v_add_f32 v{t0}, v{t0}, v{t1}")
        A(f"v_mov_b32 v{vmean}, 0x3acccccd")
        wave_red("v_add_f32", t0, st)
        A(f"v_mul_f32 v{vmean}, s{st}, v{vmean}")
        for v in vals: A(f"v_sub_f32 v{v}, v{v}, v{vmean}")
        A(f"v_mul_f32 v{t0}, v{vals[0]}, v{vals[0]}"); A(f"v_mul_f32 v{t1}, v{vals[1]}, v{vals[1]}")
        for i in range(2, len(vals), 2):
            A(f"v_fmac_f32 v{t0}, v{vals[i]}, v{vals[i]}"); A(f"v_fmac_f32 v{t1}, v{vals[i+1]}, v{vals[i+1]}")
        A(f"v_add_f32 v{t0}, v{t0}, v{t1}")
        A(f"v_mov_b32 v{t1}, 0x3acccccd")
        rne(vmean, vmean)
        wave_red("v_add_f32", t0, st)
        A(f"v_mul_f32 v{t0}, s{st}, v{t1}")
        rne(t0, t0)
        A(f"v_add_f32 v{t0}, 0x3727c5ac, v{t0}")
        rne(t0, t0)
        A(f"v_sqrt_f32 v{t0}, v{t0}")
        rne(t0, t0)
        A(f"v_rcp_f32 v{vrden}, v{t0}")
    def srd(d, b, n):
        A(f"s_mov_b32 s{d}, s{b}"); A(f"s_mov_b32 s{d+1}, s{b+1}"); A(f"s_mov_b32 s{d+2}, {n}"); A(f"s_mov_b32 s{d+3}, 0x20000")
    def sentinel_check(regs, t):
        rs = list(regs)
        if len(rs) == 1:
            A(f"v_cmp_eq_u32 vcc, -1, v{rs[0]}"); return
        if len(rs) == 2: A(f"v_max_u32 v{t}, v{rs[0]}, v{rs[1]}"); rs = []
        else: A(f"v_max3_u32 v{t}, v{rs[0]}, v{rs[1]}, v{rs[2]}"); rs = rs[3:]
        while rs:
            if len(rs) >= 2: A(f"v_max3_u32 v{t}, v{t}, v{rs[0]}, v{rs[1]}"); rs = rs[2:]
            else: A(f"v_max_u32 v{t}, v{t}, v{rs[0]}"); rs = rs[1:]
        A(f"v_cmp_eq_u32 vcc, -1, v{t}")
    def poll_loop(name, issue, check, slp=sleep):
        A("s_mov_b32 s69, 0")
        g.label(f"L_{name}")
        issue()
        A("s_waitcnt vmcnt(0)")
        check()
        A(f"s_cbranch_vccz L_{name}_ok")
        if slp: A(f"s_sleep {slp}")
        A("s_add_u32 s69, s69, 1")
        A(f"s_cmp_lt_u32 s69, {SPIN}")
        A(f"s_cbranch_scc1 L_{name}")
        g.label(f"L_{name}_ok")
    def poll_sel(name, items, t):
        for ld, _ in items: A(ld)
        A("s_mov_b32 s69, 0")
        g.label(f"L_{name}")
        A("s_waitcnt vmcnt(0)")
        A("s_mov_b32 s64, 0")
        for i, (ld, regs) in enumerate(items):
            sentinel_check(regs, t)
            A(f"s_cbranch_vccz L_{name}_s{i}")
            if lm: A("s_mov_b64 exec, vcc")
            A(ld)
            if lm: A("s_mov_b64 exec, -1")
            A("s_mov_b32 s64, 1")
            g.label(f"L_{name}_s{i}")
        A("s_cmp_eq_u32 s64, 0"); A(f"s_cbranch_scc1 L_{name}_ok")
        if sleep: A(f"s_sleep {sleep}")
        A("s_add_u32 s69, s69, 1")
        A(f"s_cmp_lt_u32 s69, {SPIN}")
        A(f"s_cbranch_scc1 L_{name}")
        A("s_waitcnt vmcnt(0)")
        g.label(f"L_{name}_ok")
    def poll_async(name, items, t):
        for _, regs in items:
            for r in regs: A(f"v_mov_b32 v{r}, -1")
        A("s_mov_b32 s69, 0")
        g.label(f"L_{name}")
        A("s_mov_b32 s64, 0")
        for i, (ld, regs) in enumerate(items):
            sentinel_check(regs, t)
            A(f"s_cbranch_vccz L_{name}_s{i}")
            if lm: A("s_mov_b64 exec, vcc")
            A(ld)
            if lm: A("s_mov_b64 exec, -1")
            A("s_mov_b32 s64, 1")
            g.label(f"L_{name}_s{i}")
        A("s_cmp_eq_u32 s64, 0"); A(f"s_cbranch_scc1 L_{name}_ok")
        A(f"s_waitcnt vmcnt({cap})")
        if aslp: A(f"s_sleep {aslp}")
        A("s_add_u32 s69, s69, 1")
        A(f"s_cmp_lt_u32 s69, {SPIN*4}")
        A(f"s_cbranch_scc1 L_{name}")
        A("s_waitcnt vmcnt(0)")
        g.label(f"L_{name}_ok")
    def tree4_oop(n, src, dst):
        h = (n + 1) // 2
        for a in range(n // 2):
            for r in range(4): A(f"v_add_f32 v{dst+4*a+r}, v{src+8*a+r}, v{src+8*a+4+r}")
        if n % 2:
            for r in range(4): A(f"v_mov_b32 v{dst+4*(h-1)+r}, v{src+4*(n-1)+r}")
        tree4(h, dst)
    lcnt = [0]
    def store_mode(txt):
        k = lcnt[0]; lcnt[0] += 1
        A("s_cmp_eq_u32 s50, 0"); A(f"s_cbranch_scc1 L_sg{k}")
        A(txt)
        A(f"s_branch L_se{k}")
        g.label(f"L_sg{k}")
        A(txt + " sc1")
        g.label(f"L_se{k}")
    def combine_ml(vm, vl, steps, t0, t1):
        A(f"v_mov_b32 v{t0}, v{vm}")
        for m in steps: dpp("v_max_f32", t0, t0, t0, m)
        A(f"v_sub_f32 v{t1}, v{vm}, v{t0}"); A(f"v_mul_f32 v{t1}, {LOG2E:#x}, v{t1}"); A(f"v_exp_f32 v{t1}, v{t1}")
        A(f"v_mul_f32 v{t1}, v{t1}, v{vl}")
        for m in steps: dpp("v_add_f32", t1, t1, t1, m)
    def ld_kv(nm, i):
        base = K0 if nm == "K" else V0
        sr = 28 if nm == "K" else 32
        grp, s = i // 3, i % 3
        off = s * 128
        so = 53
        if grp:
            A(f"s_add_u32 s64, s53, {grp*3072}"); so = 64
        g.vmem(f"buffer_load_dwordx4 v[{base+4*i}:{base+4*i+3}], v{vKV}, s[{sr}:{sr+3}], s{so} offen offset:{off} {nt}", f"{nm}{i}")
    def ld_x(i, sr, step, base=X0, s0=56):
        if i: A(f"s_add_u32 s64, s{s0}, {i*step}")
        g.vmem(f"buffer_load_dwordx4 v[{base+4*i}:{base+4*i+3}], v{vXO}, s[{sr}:{sr+3}], s{64 if i else s0} offen {nt}", f"X{i}")

    g.raw(HEADER.rstrip("\n"))
    g.raw(f"; @launch grid=(256,1,1) block=(512,1,1) lds={LDS_BYTES}")
    g.raw('.amdgcn_target "amdgcn-amd-amdhsa--gfx950"')
    g.raw(".text"); g.raw(f".globl {KN}"); g.raw(".p2align 8"); g.raw(f".type {KN},@function"); g.raw(f"{KN}:")
    A("s_getpc_b64 s[62:63]")
    A("s_load_dwordx16 s[4:19], s[0:1], 0")
    A("s_load_dwordx8 s[20:27], s[0:1], 64")
    A("s_cmp_ge_u32 s2, 256"); A("s_cbranch_scc1 L_end")
    stamp(0)
    A("v_lshlrev_b32 v5, 4, v0")
    A("s_and_b32 s62, s62, 0xffffff00")
    A("v_lshrrev_b32 v4, 6, v0")
    A("v_add_u32 v6, 8192, v5")
    A("v_min_u32 v6, CODE_BYTES-16, v6")
    g.vmem(f"global_load_dwordx4 v[{AC}:{AC+3}], v5, s[62:63]", "pf")
    g.vmem(f"global_load_dwordx4 v[{AC+4}:{AC+7}], v6, s[62:63]", "pf")
    A("v_and_b32 v0, 63, v0")
    A("v_readfirstlane_b32 s3, v4")
    A("v_lshrrev_b32 v1, 3, v0")
    A("v_and_b32 v2, 7, v0")
    A("s_and_b32 s48, s2, 7"); A("s_lshr_b32 s49, s2, 3"); A("s_lshr_b32 s50, s49, 3"); A("s_and_b32 s51, s49, 7")
    A("s_lshl_b32 s52, s48, 2"); A("s_add_u32 s52, s52, s50")
    A("s_mul_i32 s63, s51, 80"); A("s_mul_i32 s54, s63, 12288"); A("s_mul_i32 s64, s52, 384"); A("s_add_u32 s54, s54, s64")
    for k, (su, so, sl) in enumerate(((60, 56, 58), (61, 57, 59))):
        if k == 0: A("s_mov_b32 s60, s3")
        else: A("s_add_u32 s61, s3, 8"); A("s_min_u32 s61, s61, 14")
        A(f"s_mul_i32 s64, s{su}, 171"); A("s_lshr_b32 s64, s64, 9")
        A(f"s_mul_i32 s68, s64, 3"); A(f"s_sub_u32 s68, s{su}, s68")
        A(f"s_mul_i32 s{so}, s64, {16*12288}"); A(f"s_add_u32 s{so}, s{so}, s54"); A("s_lshl_b32 s69, s68, 7"); A(f"s_add_u32 s{so}, s{so}, s69")
        A(f"s_lshl_b32 s{sl}, s64, 9"); A("s_mul_i32 s69, s68, 3072"); A(f"s_add_u32 s{sl}, s{sl}, s69")
        A(f"s_lshl_b32 s{su}, s64, 5")
    A("v_mul_u32_u24 v10, 24576, v1"); A("v_lshl_add_u32 v10, v2, 4, v10")
    A("v_mul_u32_u24 v9, 20, v0")
    A("s_lshl_b32 s63, s63, 1"); A("v_lshl_add_u32 v14, v1, 2, s63")
    A("v_add_u32 v7, s60, v14"); A("v_add_u32 v8, s61, v14")
    A(f"s_mul_i32 s65, s48, {SCL}"); A(f"s_mul_i32 s47, s49, {SI}"); A("s_add_u32 s65, s65, s47")
    A("s_waitcnt lgkmcnt(0)")
    estamp(8)
    srd(36, 10, 7864320)
    XS = SC
    g.vmem(f"global_load_dwordx4 v[{XS}:{XS+3}], v9, s[4:5]", "xs")
    g.vmem(f"global_load_dword v{XS+4}, v9, s[4:5] offset:16", "xs")
    g.vmem(f"global_load_dword v{XS+5}, v7, s[4:5]", "xs")
    g.vmem(f"global_load_dword v{XS+6}, v8, s[4:5]", "xs")
    WQ = V0
    A("s_add_u32 s64, s56, 12288")
    g.vmem(f"buffer_load_dwordx4 v[{WQ}:{WQ+3}], v10, s[36:39], s56 offen {nt}", "wq")
    g.vmem(f"buffer_load_dwordx4 v[{WQ+4}:{WQ+7}], v10, s[36:39], s64 offen {nt}", "wq")
    A("s_cmp_eq_u32 s3, 7"); A("s_cbranch_scc1 L_w7")
    A("s_add_u32 s64, s57, 12288")
    g.vmem(f"buffer_load_dwordx4 v[{WQ+8}:{WQ+11}], v10, s[36:39], s57 offen {nt}", "wq2", optional=True)
    g.vmem(f"buffer_load_dwordx4 v[{WQ+12}:{WQ+15}], v10, s[36:39], s64 offen {nt}", "wq2", optional=True)
    A("s_branch L_w7_done")
    g.label("L_w7")
    CL = K0
    A("v_lshlrev_b32 v13, 4, v0")
    for r in range(CL, CL + 4): A(f"v_mov_b32 v{r}, -1")
    A("s_add_u32 s64, s65, 4096")
    A("v_add_u32 v5, s64, v13")
    for i in range(4): A(f"global_store_dwordx4 v5, v[{CL}:{CL+3}], s[26:27] offset:{i*1024} sc1")
    A("s_cmp_lt_u32 s2, 160"); A("s_cbranch_scc1 L_clr2")
    A("v_add_u32 v5, 4096, v5")
    A(f"global_store_dwordx4 v5, v[{CL}:{CL+3}], s[26:27] sc1")
    g.label("L_clr2")
    A(f"v_mov_b32 v{CL+4}, 0"); A(f"v_mov_b32 v{CL+5}, 0")
    A("v_lshlrev_b32 v6, 3, v0")
    for t in range(3): A(f"ds_write_b64 v6, v[{CL+4}:{CL+5}] offset:{L_QS + t*3072 + 2560}")
    g.label("L_w7_done")
    estamp(9)
    A("s_load_dword s67, s[26:27], 0")
    A("s_add_u32 s26, s26, 4096"); A("s_addc_u32 s27, s27, 0")
    srd(28, 6, 100663296); srd(32, 8, 100663296)
    A("s_mul_i32 s53, s52, 3145728"); A("s_mul_i32 s60, s51, 98304"); A("s_add_u32 s53, s53, s60")
    A("s_mul_i32 s60, s3, 24576"); A("s_add_u32 s53, s53, s60"); A(f"s_add_u32 s53, s53, {6144*384}")
    A("v_mul_u32_u24 v3, 384, v1"); A("v_lshl_add_u32 v3, v2, 4, v3")
    A("s_barrier")
    A("s_cmp_ge_u32 s3, 4"); A("s_cbranch_scc1 L_nok0")
    for i in range(k0): ld_kv("K", i)
    for e in g.vm[-k0:]: e[1] = True
    g.label("L_nok0")
    estamp(10)
    A("v_lshlrev_b32 v4, 2, v0"); A(f"v_mov_b32 v{vOPA}, 0")
    A("v_and_b32 v13, 1, v2"); A("v_lshlrev_b32 v13, 4, v13"); A("v_mov_b32 v14, 0xffff"); A("v_lshlrev_b32 v14, v13, v14")
    A("v_lshrrev_b32 v13, 1, v2")
    for r in range(4):
        A(f"v_cmp_eq_u32 vcc, {r}, v13"); A(f"v_cndmask_b32 v{MK+r}, 0, v14, vcc")
    A("v_bfe_u32 v13, v0, 4, 1"); A("v_lshlrev_b32 v13, 4, v13"); A(f"v_lshl_add_u32 v{vCOL}, v2, 5, v13")
    A("s_mov_b32 s98, 0x00ff00ff"); A("s_mov_b32 s99, 0xff00ff00")
    A(f"v_lshlrev_b32 v{vL16}, 4, v0")
    A("v_lshrrev_b32 v13, 5, v0"); A(f"v_lshl_add_u32 v{vSLOT}, v13, 8, v{vCOL}")
    A(f"v_and_b32 v{vRC4}, 15, v0"); A(f"v_lshl_add_u32 v{vRC4}, v{vRC4}, 2, v13")
    A("v_bfe_u32 v13, v0, 4, 1"); A(f"v_lshl_add_u32 v{vRC4}, v13, 1, v{vRC4}"); A(f"v_lshlrev_b32 v{vRC4}, 2, v{vRC4}")
    A(f"s_mul_i32 s66, s50, {8*SI}"); A(f"s_mul_i32 s47, s48, {SCL}"); A("s_add_u32 s66, s66, s47")
    A(f"v_add_u32 v{vT0}, s58, v{vSLOT}"); A(f"v_add_u32 v{vT1}, s59, v{vSLOT}")
    A(f"v_bfe_u32 v13, v{vRC4}, 2, 4"); A(f"v_lshrrev_b32 v14, 7, v{vRC4}"); A(f"v_lshl_add_u32 v{vC2}, v13, 2, v14")
    A(f"v_bfe_u32 v13, v{vRC4}, 6, 1"); A(f"v_lshl_add_u32 v{vC2}, v13, 1, v{vC2}"); A(f"v_lshlrev_b32 v{vC2}, 2, v{vC2}")
    A("s_cmp_ge_u32 s3, 4"); A("s_cbranch_scc1 L_xw_h")
    A(f"s_waitcnt vmcnt({4+k0})"); A("s_branch L_xw_d")
    g.label("L_xw_h")
    A("s_waitcnt vmcnt(4)")
    g.label("L_xw_d")
    estamp(12)
    vals = []
    for i in range(5):
        A(f"v_lshlrev_b32 v{AC+2*i}, 16, v{XS+i}"); A(f"v_and_b32 v{AC+2*i+1}, 0xffff0000, v{XS+i}")
        vals += [AC + 2 * i, AC + 2 * i + 1]
    MU = [9, 10, 11, 12]
    A(f"v_lshlrev_b32 v9, 16, v{XS+5}"); A(f"v_and_b32 v10, 0xffff0000, v{XS+5}")
    A(f"v_lshlrev_b32 v11, 16, v{XS+6}"); A(f"v_and_b32 v12, 0xffff0000, v{XS+6}")
    ln_stats(vals, 5, 6, 7, 8, 60)
    for v in MU: A(f"v_sub_f32 v{v}, v{v}, v5")
    for v in MU: rne(v, v)
    for v in MU: A(f"v_mul_f32 v{v}, v{v}, v6")
    for v in MU: A(f"v_cvt_pk_bf16_f32 v{v}, v{v}, v{v}")
    QB4 = [Q0, Q0 + 4, Q0 + 8, SC]
    for v, d in zip(MU, QB4): buildB(d, v)
    estamp(13)
    A("s_waitcnt lgkmcnt(0)")
    A("s_add_u32 s67, s67, 1")
    A("s_cmp_ge_u32 s3, 4"); A("s_cbranch_scc1 L_qw_h")
    A(f"s_waitcnt vmcnt({k0})")
    for i in range(k0, W): ld_kv("K", i)
    A("s_branch L_qw_d")
    g.label("L_qw_h")
    A("s_waitcnt vmcnt(0)")
    A("s_cmp_lg_u32 s3, 7"); A("s_cbranch_scc1 L_qw_d")
    A("s_getreg_b32 s60, hwreg(HW_REG_XCC_ID)")
    A("v_mov_b32 v5, s65"); A("v_mov_b32 v6, s67"); A("v_mov_b32 v7, s60")
    A("s_mov_b64 exec, 1")
    A(f"global_store_dwordx2 v5, v[6:7], s[26:27] offset:{OFF_FL} sc1")
    exec_all()
    g.label("L_qw_d")
    stamp(1)
    mfma(AC, QB4[0], WQ, True); mfma(AC, QB4[1], WQ + 4, False)
    A("s_cmp_eq_u32 s3, 7"); A("s_cbranch_scc1 L_q1")
    mfma(AC + 4, QB4[2], WQ + 8, True); mfma(AC + 4, QB4[3], WQ + 12, False)
    exec_valid(); slot_write(AC + 4, L_QS, vT1); exec_all()
    g.label("L_q1")
    exec_valid(); slot_write(AC, L_QS, vT0); exec_all()
    A("s_mov_b32 s36, s4"); A("s_mov_b32 s37, s5")
    A("s_cmp_ge_u32 s2, 160"); A("s_cbranch_scc1 L_role_mlp")
    A("s_cmp_ge_u32 s49, 10"); A("s_cselect_b32 s60, 1, 0")
    A("s_mul_i32 s61, s60, 10"); A("s_sub_u32 s61, s49, s61")
    A("s_lshl_b32 s62, s48, 2"); A("s_lshl_b32 s63, s60, 1"); A("s_add_u32 s62, s62, s63")
    A("s_mul_i32 s62, s62, 192"); A("s_mul_i32 s63, s3, 48"); A("s_add_u32 s62, s62, s63")
    A("s_mul_i32 s56, s62, 1280"); A("s_lshl_b32 s63, s61, 7"); A("s_add_u32 s56, s56, s63")
    srd(40, 12, 7864320); srd(44, 12, 7864320)
    A(f"v_mul_u32_u24 v{vXO}, 1280, v1"); A(f"v_lshl_add_u32 v{vXO}, v2, 4, v{vXO}")
    A("s_branch L_role_done")
    g.label("L_role_mlp")
    A("s_mul_i32 s60, s48, 12"); A("s_add_u32 s60, s60, s49"); A("s_sub_u32 s60, s60, 20")
    A("s_and_b32 s61, s60, 3"); A("s_mul_i32 s56, s61, %d" % (160 * 3072)); A("s_and_b32 s61, s3, 3"); A("s_mul_i32 s61, s61, %d" % (40 * 3072)); A("s_add_u32 s56, s56, s61")
    A("s_lshr_b32 s61, s60, 2"); A("s_lshl_b32 s61, s61, 7"); A("s_add_u32 s56, s56, s61")
    A("s_cmp_ge_u32 s3, 4"); A("s_cselect_b32 s40, s18, s16"); A("s_cselect_b32 s41, s19, s17")
    A("s_mov_b32 s42, 1966080"); A("s_mov_b32 s43, 0x20000")
    srd(44, 20, 1966080)
    A("s_mul_i32 s57, s60, %d" % (16 * 1280)); A("s_lshl_b32 s61, s3, 8"); A("s_add_u32 s57, s57, s61")
    A(f"v_mul_u32_u24 v{vXO}, 3072, v1"); A(f"v_lshl_add_u32 v{vXO}, v2, 4, v{vXO}")
    g.label("L_role_done")
    A("s_waitcnt lgkmcnt(0)")
    A("s_barrier")
    A("s_cmp_ge_u32 s3, 4"); A("s_cbranch_scc1 L_helper")

    g.vm = [[f"K{i}", False] for i in range(W)]
    seq = [("K", i) for i in range(24)] + [("V", i) for i in range(24)]
    n = [W]
    def nxt(throttle=True):
        nonlocal W
        if n[0] >= 48: return
        if throttle:
            pn, pi = seq[n[0] - W]; g.wait(f"{pn}{pi}")
        ld_kv(*seq[n[0]]); n[0] += 1
    stamp(2)
    while n[0] < 24 + vb: nxt()
    mstamp(10)
    A("s_barrier")
    A("v_lshlrev_b32 v5, 4, v2")
    for s in range(3): A(f"ds_read_b128 v[{Q0+4*s}:{Q0+4*s+3}], v5 offset:{L_QB + s*128}")
    g.wait("K23")
    stamp(3)
    A("s_waitcnt lgkmcnt(0)")
    for gp in range(4):
        for i in range(12):
            for gi in (2 * gp, 2 * gp + 1):
                c = "0" if i == 0 else f"v{SC+gi}"
                A(f"v_dot2_f32_bf16 v{SC+gi}, v{K0+12*gi+i}, v{Q0+i}, {c}")
        nxt()
    red8([SC + i for i in range(8)])
    nxt()
    for p in range(4): A(f"v_cvt_pk_bf16_f32 v{5+p}, v{SC+2*p}, v{SC+2*p+1}")
    for p in range(4): A(f"v_lshlrev_b32 v{SC+2*p}, 16, v{5+p}"); A(f"v_and_b32 v{SC+2*p+1}, 0xffff0000, v{5+p}")
    for i in range(8): A(f"v_mul_f32 v{SC+i}, 0x3d93cd3a, v{SC+i}")
    for p in range(4): A(f"v_cvt_pk_bf16_f32 v{5+p}, v{SC+2*p}, v{SC+2*p+1}")
    for p in range(4): A(f"v_lshlrev_b32 v{SC+2*p}, 16, v{5+p}"); A(f"v_and_b32 v{SC+2*p+1}, 0xffff0000, v{5+p}")
    A(f"v_max3_f32 v5, v{SC}, v{SC+1}, v{SC+2}"); A(f"v_max3_f32 v6, v{SC+3}, v{SC+4}, v{SC+5}")
    A(f"v_max3_f32 v5, v5, v{SC+6}, v{SC+7}"); A("v_max_f32 v5, v5, v6")
    wave_red("v_max_f32", 5, 60, full=False)
    for i in range(8): A(f"v_subrev_f32 v{AC+i}, s60, v{SC+i}")
    for i in range(8): A(f"v_mul_f32 v{AC+i}, {LOG2E:#x}, v{AC+i}")
    for i in range(8): A(f"v_exp_f32 v{AC+i}, v{AC+i}")
    for i in range(4): A(f"v_add_f32 v{AC+i}, v{AC+i}, v{AC+4+i}")
    A(f"v_add_f32 v{AC}, v{AC}, v{AC+1}"); A(f"v_add_f32 v{AC+2}, v{AC+2}, v{AC+3}"); A(f"v_add_f32 v5, v{AC}, v{AC+2}")
    wave_red("v_add_f32", 5, 61, full=False)
    A("v_mov_b32 v6, s60"); A("v_mov_b32 v7, s61")
    A("s_lshl_b32 s62, s3, 3"); A("v_mov_b32 v5, s62")
    A(f"ds_write_b64 v5, v[6:7] offset:{L_ML}")
    A("s_waitcnt lgkmcnt(0)")
    A("s_barrier")
    stamp(4)
    for _ in range(W2): nxt(throttle=False)
    Wsave = W; W = W + W2
    while n[0] < 48: nxt()
    vm_s = [list(e) for e in g.vm]
    def s_tail(R):
        g.vm = [list(e) for e in vm_s]
        A("s_barrier")
        A("v_mov_b32 v5, 0")
        A(f"ds_read_b96 v[6:8], v5 offset:{L_MF}")
        stamp(5)
        A("s_lshl_b32 s61, s3, 9"); A(f"v_add_u32 v10, s61, v{vSLOT}")
        A("s_waitcnt lgkmcnt(0)")
        A("v_readfirstlane_b32 s50, v8")
        for i in range(8): A(f"v_sub_f32 v{SC+i}, v{SC+i}, v6")
        for i in range(8): A(f"v_mul_f32 v{SC+i}, {LOG2E:#x}, v{SC+i}")
        for i in range(8): A(f"v_exp_f32 v{SC+i}, v{SC+i}")
        for i in range(8): A(f"v_mul_f32 v{SC+i}, v{SC+i}, v7")
        for i in range(8): A(f"v_cvt_pk_bf16_f32 v{SC+i}, v{SC+i}, v{SC+i}")
        xi = 0
        for gi in range(8):
            bm = BM + 4 * (gi % 3)
            buildB(bm, SC + gi)
            for s in range(3):
                g.wait(f"V{3*gi+s}")
                if R == "A" and 3 * gi + s >= 24 - W and xi < xa_s:
                    ld_x(xi, 40, 10240); xi += 1
                mfma(AC + 4 * s, bm, V0 + 12 * gi + 4 * s, gi == 0)
                if gi == 7:
                    if s == 2: stamp(6)
                    exec_valid(); slot_write(AC + 4 * s, L_OS + 2048 * s, 10); exec_all()
        A("s_waitcnt lgkmcnt(0)")
        A("s_barrier")
        return xi
    A("s_cmp_ge_u32 s2, 160"); A("s_cbranch_scc1 L_sB")
    xi = s_tail("A")
    for i in range(xi, 6): ld_x(i, 40, 10240)
    A("s_branch L_wo")
    g.label("L_sB")
    s_tail("B")
    A("s_branch L_mlp")

    g.label("L_helper")
    g.vm = []
    A("s_sub_u32 s68, s3, 4")
    A("s_cmp_eq_u32 s3, 7"); A("s_cbranch_scc1 L_h_noq")
    A("s_mul_i32 s61, s68, 3072"); A(f"v_add_u32 v6, s61, v{vL16}")
    A("s_lshl_b32 s61, s68, 8"); A("s_add_u32 s61, s61, s65"); A("v_add_u32 v5, s61, v4")
    A(f"v_mul_u32_u24 v{Q0+1}, {SI}, v2"); A(f"v_add_u32 v{Q0+1}, s66, v{Q0+1}")
    slot_sum(3, L_QS, 6, AC)
    A(f"global_store_dword v5, v{AC}, s[26:27] offset:{OFF_QP} sc1")
    stamp(2)
    A(f"v_lshrrev_b32 v13, 2, v{vRC4}") if False else None
    A(f"v_lshrrev_b32 v9, 2, v{vRC4}"); A("s_lshl_b32 s60, s68, 6"); A("v_add_u32 v9, s60, v9")
    A("v_mul_u32_u24 v14, 171, v9"); A("v_lshrrev_b32 v14, 12, v14")
    A("v_mul_u32_u24 v5, 24, v14"); A("v_sub_u32 v9, v9, v5")
    A(f"v_mul_u32_u24 v14, {SI}, v14"); A("v_lshl_add_u32 v14, v9, 5, v14")
    A("s_lshl_b32 s60, s51, 2"); A("s_add_u32 s60, s60, s66"); A(f"v_add_u32 v{vOPA}, s60, v14")
    def check_gf():
        A(f"v_cmp_ne_u32 vcc, s67, v{Q0+2}"); A(f"v_cmp_eq_u32 s[60:61], -1, v{Q0+3}"); A("s_or_b64 vcc, vcc, s[60:61]")
    poll_loop("gf", lambda: A(f"global_load_dwordx2 v[{Q0+2}:{Q0+3}], v{Q0+1}, s[26:27] offset:{OFF_FL} sc1"), check_gf)
    mstamp(8)
    A("v_lshrrev_b32 v5, 4, v0"); A(f"v_mul_u32_u24 v5, {SI}, v5"); A("v_and_b32 v6, 15, v0"); A("v_lshl_add_u32 v5, v6, 4, v5")
    A("s_lshl_b32 s61, s68, 8"); A("s_add_u32 s61, s61, s66"); A(f"v_add_u32 v{Q0}, s61, v5")
    A(f"v_add_u32 v{Q0+1}, {4*SI}, v{Q0}")
    poll_sel("q", [(f"global_load_dwordx4 v[{AC+4*k}:{AC+4*k+3}], v{Q0+k}, s[26:27] offset:{OFF_QP} sc1", range(AC + 4 * k, AC + 4 * k + 4)) for k in range(2)], 5)
    mstamp(12)
    for r in range(4): A(f"v_add_f32 v{AC+r}, v{AC+r}, v{AC+4+r}")
    red4_rows(AC)
    A(f"v_cvt_pk_bf16_f32 v{AC}, v{AC}, v{AC}")
    A(f"v_lshrrev_b32 v5, 1, v{vC2}")
    A("s_lshl_b32 s61, s68, 7"); A("v_add_u32 v5, s61, v5")
    A(f"ds_write_b16 v5, v{AC} offset:{L_QB}")
    A("s_branch L_h_b2")
    g.label("L_h_noq")
    FA, FD = Q0, AC
    A(f"v_mul_u32_u24 v{FA}, {SCL}, v2"); A(f"v_mul_u32_u24 v5, {SI}, v1"); A(f"v_add_u32 v{FA}, v{FA}, v5")
    for i in range(1, 4): A(f"v_add_u32 v{FA+i}, {8*SI*i}, v{FA}")
    def issue_af():
        for i in range(4): A(f"global_load_dwordx2 v[{FD+2*i}:{FD+2*i+1}], v{FA+i}, s[26:27] offset:{OFF_FL} sc1")
    def check_af():
        for i in range(4): A(f"v_xor_b32 v{FD+8+i}, s67, v{FD+2*i}")
        A(f"v_or3_b32 v{FD+8}, v{FD+8}, v{FD+9}, v{FD+10}"); A(f"v_or_b32 v{FD+8}, v{FD+8}, v{FD+11}")
        A(f"v_max3_u32 v5, v{FD+1}, v{FD+3}, v{FD+5}"); A(f"v_max_u32 v5, v5, v{FD+7}")
        A(f"v_cmp_ne_u32 vcc, 0, v{FD+8}")
        A("v_cmp_eq_u32 s[60:61], -1, v5")
        A("s_or_b64 vcc, vcc, s[60:61]")
    A("s_sleep 32")
    poll_loop("af", issue_af, check_af, slp=16)
    A("s_getreg_b32 s62, hwreg(HW_REG_XCC_ID)")
    for i in range(4): A(f"v_xor_b32 v{FD+8+i}, s62, v{FD+1+2*i}")
    A(f"v_or3_b32 v{FD+8}, v{FD+8}, v{FD+9}, v{FD+10}"); A(f"v_or_b32 v{FD+8}, v{FD+8}, v{FD+11}")
    A(f"v_cmp_ne_u32 vcc, 0, v{FD+8}")
    A("v_cmp_eq_u32 s[60:61], s48, v2")
    A("s_and_b64 vcc, vcc, s[60:61]")
    A("s_cmp_eq_u64 vcc, 0"); A(f"s_cselect_b32 s50, {1 if local else 0}, 0")
    g.label("L_h_b2")
    A("s_waitcnt lgkmcnt(0)")
    A("s_barrier")
    A("s_barrier")
    A("s_cmp_lg_u32 s3, 7"); A("s_cbranch_scc1 L_h_noml")
    A("v_and_b32 v5, 3, v0"); A("v_lshlrev_b32 v5, 3, v5")
    A(f"ds_read_b64 v[8:9], v5 offset:{L_ML}")
    A("v_mov_b32 v5, s65")
    A("s_waitcnt lgkmcnt(0)")
    combine_ml(8, 9, S8[:2], 6, 7)
    A("s_mov_b64 exec, 1")
    A(f"global_store_dwordx2 v5, v[6:7], s[26:27] offset:{OFF_ML} sc1")
    exec_all()
    stamp(4)
    A("s_add_u32 s60, s26, s66"); A("s_addc_u32 s61, s27, 0")
    A("s_mov_b32 s69, 0")
    g.label("L_ml")
    for j in range(8): A(f"s_load_dwordx2 s[{4+2*j}:{5+2*j}], s[60:61], {j*SI + OFF_ML} glc")
    A("s_waitcnt lgkmcnt(0)")
    A("s_max_u32 s62, s4, s5")
    for j in range(6, 20): A(f"s_max_u32 s62, s62, s{j}")
    A("s_cmp_lg_u32 s62, -1"); A("s_cbranch_scc1 L_ml_ok")
    if mlslp: A(f"s_sleep {mlslp}")
    A("s_add_u32 s69, s69, 1"); A(f"s_cmp_lt_u32 s69, {SPIN}"); A("s_cbranch_scc1 L_ml")
    g.label("L_ml_ok")
    mstamp(13)
    A("v_mov_b32 v6, s4"); A("v_mov_b32 v7, s5")
    for j in range(1, 8):
        A(f"v_writelane_b32 v6, s{4+2*j}, {j}"); A(f"v_writelane_b32 v7, s{5+2*j}, {j}")
    combine_ml(6, 7, S8, 8, 9)
    A("v_rcp_f32 v9, v9")
    A("v_mov_b32 v10, s50"); A("v_mov_b32 v5, 0")
    A("s_mov_b64 exec, 1")
    A(f"ds_write_b96 v5, v[8:10] offset:{L_MF}")
    exec_all()
    g.label("L_h_noml")
    A("s_cmp_ge_u32 s2, 160"); A("s_cbranch_scc1 L_h_nox")
    if xa_h: A("s_cmp_eq_u32 s3, 7"); A("s_cbranch_scc1 L_h_x"); A(f"s_sleep {xa_h}"); g.label("L_h_x")
    for i in range(6): ld_x(i, 40, 10240)
    g.label("L_h_nox")
    A("s_waitcnt lgkmcnt(0)")
    A("s_barrier")
    A("v_mov_b32 v5, 0")
    A(f"ds_read_b32 v8, v5 offset:{L_MF+8}")
    A("s_lshl_b32 s61, s68, 11"); A(f"v_add_u32 v6, s61, v{vL16}")
    A("s_waitcnt lgkmcnt(0)")
    A("v_readfirstlane_b32 s50, v8")
    A("s_barrier")
    A("s_cmp_eq_u32 s3, 7"); A("s_cbranch_scc1 L_h_noop")
    slot_sum(2, L_OS, 6, AC)
    store_mode(f"global_store_dword v{vOPA}, v{AC}, s[26:27] offset:{OFF_OP}")
    stamp(7)
    g.label("L_h_noop")
    A("s_cmp_ge_u32 s2, 160"); A("s_cbranch_scc1 L_mlp")

    g.label("L_wo")
    A("s_cmp_ge_u32 s49, 10"); A("s_cselect_b32 s60, 2, 0"); A("s_lshr_b32 s61, s3, 2"); A("s_add_u32 s60, s60, s61")
    A("s_lshl_b32 s60, s60, 3"); A("s_and_b32 s61, s3, 3"); A("s_lshl_b32 s61, s61, 1"); A("s_add_u32 s60, s60, s61")
    A(f"s_mul_i32 s60, s60, {SI}"); A(f"s_mul_i32 s61, s48, {SCL}"); A("s_add_u32 s60, s60, s61")
    A("v_add_u32 v14, s60, v4"); A(f"v_add_u32 v12, {SI}, v14")
    A("s_lshl_b32 s61, s3, 9"); A(f"v_add_u32 v11, s61, v{vSLOT}")
    OD = SC
    def issue_o():
        for i in range(6): A(f"global_load_dword v{OD+i}, v{14 if i < 3 else 12}, s[26:27] offset:{OFF_OP + 256*(i%3)} sc1")
    if "o" in asy:
        OS_ = V0
        poll_async("o", [(None, None)] and [("\n    ".join(f"global_load_dword v{OS_+3*h+i}, v{14 if h == 0 else 12}, s[26:27] offset:{OFF_OP + 256*i} sc1" for i in range(3)), range(OS_ + 3 * h, OS_ + 3 * h + 3)) for h in range(2)], 5)
        stamp(8)
        for i in range(6): dpp("v_add_f32", OD + i, OS_ + i, OS_ + i, S8[0])
        for m in S8[1:]:
            for i in range(6): dpp("v_add_f32", OD + i, OD + i, OD + i, m)
    else:
        poll_loop("o", issue_o, lambda: sentinel_check(range(OD, OD + 6), 5))
        stamp(8)
        red8([OD + i for i in range(6)])
    for i in range(6): A(f"v_cvt_pk_bf16_f32 v{OD+i}, v{OD+i}, v{OD+i}")
    for i in range(6):
        bm = BM + 4 * (i % 3)
        buildB(bm, OD + i)
        mfma(AC, bm, X0 + 4 * i, i == 0)
    exec_valid(); slot_write(AC, L_WS, 11); exec_all()
    A("s_waitcnt lgkmcnt(0)")
    stamp(9)
    A("s_barrier")
    if repl:
        A("s_lshl_b32 s60, s3, 8"); A("s_add_u32 s60, s60, s65"); A("v_add_u32 v5, s60, v4")
    else:
        A("s_cmp_lg_u32 s3, 0"); A("s_cbranch_scc1 L_exit")
        A("v_add_u32 v5, s65, v4")
    slot_sum(4, L_WS, vL16, AC)
    A(f"global_store_dword v5, v{AC}, s[26:27] offset:{OFF_T} sc1")
    stamp(10)
    A("s_branch L_exit")

    g.label("L_mlp")
    if xdel < 0:
        A("s_cmp_lg_u32 s3, 7"); A("s_cbranch_scc1 L_m_go")
        A("v_bfe_u32 v5, v0, 3, 2"); A(f"v_mul_u32_u24 v9, {8*SI}, v5"); A("v_lshl_add_u32 v9, v2, 2, v9")
        A(f"s_mul_i32 s60, s48, {SCL}"); A("v_add_u32 v9, s60, v9")
        poll_loop("xg", lambda: A(f"global_load_dword v8, v9, s[26:27] offset:{OFF_OP} sc1"), lambda: sentinel_check([8], 5), slp=2)
        g.label("L_m_go")
    elif xdel:
        A(f"s_sleep {xdel}")
    A("s_barrier")
    for i in range(5): ld_x(i, 40, 8 * 3072)
    DW = V0
    A("s_cmp_ge_u32 s3, 5"); A("s_cbranch_scc1 L_m_nodown")
    A("v_mul_u32_u24 v12, 1280, v1"); A("v_lshl_add_u32 v12, v2, 4, v12")
    for i, off in enumerate((0, 10240, 128, 10368)):
        A(f"s_add_u32 s64, s57, {off}")
        A(f"buffer_load_dwordx4 v[{DW+4*i}:{DW+4*i+3}], v12, s[44:47], s64 offen {nt}")
    g.label("L_m_nodown")
    A("s_mul_i32 s61, s3, 5120"); A(f"v_add_u32 v6, s61, v{vL16}")
    A("s_cmp_ge_u32 s3, 5"); A("s_cbranch_scc1 L_m_w5")
    A("s_waitcnt vmcnt(4)"); A("s_branch L_m_w5d")
    g.label("L_m_w5"); A("s_waitcnt vmcnt(0)")
    g.label("L_m_w5d")
    for i in range(5): A(f"ds_write_b128 v6, v[{X0+4*i}:{X0+4*i+3}] offset:{L_WS + i*1024}")
    A("s_waitcnt lgkmcnt(0)")
    A("s_barrier")
    stamp(9)
    A("s_cmp_ge_u32 s3, 6"); A("s_cbranch_scc1 L_exit2")
    A("s_cmp_eq_u32 s3, 5"); A("s_cbranch_scc1 L_fin")
    A("v_lshrrev_b32 v5, 4, v0"); A("v_bfe_u32 v6, v0, 2, 2"); A("v_lshl_add_u32 v5, v5, 3, v6"); A("v_lshlrev_b32 v5, 7, v5")
    A("v_and_b32 v6, 3, v0"); A("v_lshl_add_u32 v5, v6, 3, v5")
    A("s_and_b32 s61, s3, 3"); A("s_lshl_b32 s61, s61, 5"); A("v_add_u32 v5, s61, v5")
    A("s_sub_u32 s63, s49, 20"); A("s_and_b32 s63, s63, 3")
    BF = K0
    for ks in range(5):
        for m in range(2):
            tI = ks * 2 + m
            A(f"ds_read_b64_tr_b16 v[{BF+4*tI}:{BF+4*tI+1}], v5 offset:{L_WS + m*20480 + ks*4096}")
            A(f"ds_read_b64_tr_b16 v[{BF+4*tI+2}:{BF+4*tI+3}], v5 offset:{L_WS + m*20480 + ks*4096 + 512}")
    AF = K0 + 64
    A("s_mul_i32 s60, s63, 640"); A(f"v_lshl_add_u32 v{vT0}, v0, 2, s60")
    A("v_and_b32 v9, 31, v0"); A("v_lshl_add_u32 v9, v9, 2, s60")
    A("s_mul_i32 s61, s3, 384"); A("v_lshl_add_u32 v10, v0, 1, s61")
    A("v_lshrrev_b32 v11, 4, v0"); A("v_lshlrev_b32 v11, 4, v11"); A("v_add_u32 v11, s61, v11")
    A("s_and_b32 s61, s3, 3"); A("s_sub_u32 s61, s61, s63"); A(f"s_mul_i32 s61, s61, {SI}"); A("s_add_u32 s61, s61, s65")
    A("s_lshl_b32 s60, s63, 4"); A("s_add_u32 s60, s60, s61"); A(f"s_add_u32 s60, s60, {OFF_T2}")
    A("v_bfe_u32 v6, v0, 3, 1"); A("v_lshlrev_b32 v6, 3, v6"); A("v_lshl_add_u32 v12, v2, 6, v6"); A("v_add_u32 v12, s60, v12")
    A("s_lshl_b32 s60, s3, 9"); A("s_add_u32 s60, s60, s65")
    A("v_lshrrev_b32 v14, 4, v0"); A("v_lshlrev_b32 v14, 7, v14"); A("v_lshl_add_u32 v14, v2, 4, v14"); A("v_add_u32 v14, s60, v14")
    GA = K0 + 48
    A("v_and_b32 v6, 3, v2"); A("v_lshlrev_b32 v6, 4, v6"); A("v_lshl_add_u32 v6, v1, 6, v6"); A(f"s_add_u32 s60, s65, {OFF_T2}"); A(f"v_add_u32 v{GA}, s60, v6")
    HA = K0 + 52; HD = V0 + 16
    A("v_lshrrev_b32 v5, 5, v0"); A(f"v_mul_u32_u24 v{HA}, {SCL}, v5")
    A("v_bfe_u32 v5, v0, 4, 1"); A(f"v_mul_u32_u24 v5, {10*SI}, v5"); A(f"v_add_u32 v{HA}, v{HA}, v5")
    A("v_and_b32 v5, 15, v0"); A(f"v_lshl_add_u32 v{HA}, v5, 4, v{HA}")
    A(f"s_mul_i32 s60, s3, {2*SI}")
    if repl: A("s_lshl_b32 s61, s48, 8"); A("s_add_u32 s60, s60, s61")
    A(f"v_add_u32 v{HA}, s60, v{HA}")
    for i in range(1, 8): A(f"v_add_u32 v{HA+i}, {2*SCL*(i%4) + SI*(i//4)}, v{HA}")
    A("s_lshl_b32 s61, s3, 9"); A(f"v_add_u32 v{vT1}, s61, v{vC2}")
    A(f"v_lshrrev_b32 v5, 1, v{vT1}"); A(f"v_mov_b32 v{SC}, 0"); A(f"v_mov_b32 v{SC+1}, 0")
    A(f"global_load_short_d16_hi v{SC}, v5, s[36:37]"); A(f"global_load_short_d16_hi v{SC+1}, v5, s[36:37] offset:128")
    A("v_lshlrev_b32 v4, 3, v0")
    if pre:
        A(f"global_load_dwordx4 v[{AC}:{AC+3}], v{GA}, s[26:27] sc1")
    hitems = [(f"global_load_dwordx4 v[{HD+4*i}:{HD+4*i+3}], v{HA+i}, s[26:27] offset:{OFF_T} sc1", range(HD + 4 * i, HD + 4 * i + 4)) for i in range(8)]
    HS = HD; HD = V0 + 48
    if "h" in asy: poll_async("h", hitems, 5)
    else: poll_sel("h", hitems, 5)
    stamp(8)
    for b in range(2): tree4_oop(4, HS + 16 * b, HD + 16 * b)
    for b in range(2): red4_rows(HD + 16 * b)
    for b in range(2): rne(HD + 16 * b, HD + 16 * b)
    for b in range(2): A(f"v_add_f32 v{HD+16*b}, v{HD+16*b}, v{SC+b}")
    for b in range(2): rne(HD + 16 * b, HD + 16 * b)
    for b in range(2): A(f"ds_write_b32 v{vT1}, v{HD+16*b} offset:{L_HB + 256*b}")
    A("s_waitcnt lgkmcnt(0)")
    A("s_barrier")
    stamp(10)
    A("s_cmp_eq_u32 s3, 4"); A("s_cbranch_scc1 L_m_gp")
    A(f"ds_read_b128 v[{AC}:{AC+3}], v{vL16} offset:{L_HB}"); A(f"ds_read_b128 v[{AC+4}:{AC+7}], v{vL16} offset:{L_HB+1024}")
    A(f"ds_read_b64 v[{AC+8}:{AC+9}], v4 offset:{L_HB+2048}")
    A(f"ds_read_b32 v{AC+10}, v{vT0} offset:{L_HB}"); A(f"ds_read_b32 v{AC+11}, v{vT0} offset:{L_HB+256}"); A(f"ds_read_b32 v{AC+12}, v9 offset:{L_HB+512}")
    A("s_waitcnt lgkmcnt(0)")
    ln_stats(list(range(AC, AC + 10)), 5, 6, 7, 8, 64)
    HN3 = [AC + 10, AC + 11, AC + 12]
    for v in HN3: A(f"v_sub_f32 v{v}, v{v}, v5")
    for v in HN3: rne(v, v)
    for v in HN3: A(f"v_mul_f32 v{v}, v{v}, v6")
    for v in HN3: A(f"v_cvt_pk_bf16_f32 v{v}, v{v}, v{v}")
    for i, v in enumerate(HN3): A(f"ds_write_b16 v10, v{v} offset:{L_HN + 128*i}")
    for ks in range(5): A(f"ds_read_b128 v[{AF+4*ks}:{AF+4*ks+3}], v11 offset:{L_HN + 64*ks}")
    for ks in range(5):
        A(f"s_waitcnt lgkmcnt({4-ks})")
        mfma(AC, AF + 4 * ks, BF + 8 * ks, ks == 0)
        mfma(AC + 4, AF + 4 * ks, BF + 8 * ks + 4, ks == 0)
    A("s_mov_b64 exec, 0xffff")
    A(f"v_mov_b32 v{AC+1}, v{AC+4}")
    store_mode(f"global_store_dwordx2 v12, v[{AC}:{AC+1}], s[26:27]")
    exec_all()
    g.label("L_m_gp")
    stamp(11)
    GD = V0 + 80
    if "g" in asy: poll_async("gu", [(f"global_load_dwordx4 v[{GD}:{GD+3}], v{GA}, s[26:27] sc1", range(GD, GD + 4))], 5)
    else: poll_loop("gu", lambda: A(f"global_load_dwordx4 v[{GD}:{GD+3}], v{GA}, s[26:27] sc1"), lambda: sentinel_check(range(GD, GD + 4), 5))
    stamp(12)
    G0 = AC
    for r, dst in enumerate((G0, G0 + 2, G0 + 1, G0 + 3)): dpp("v_add_f32", dst, GD + r, GD + r, S8[0])
    for dst in (G0, G0 + 2, G0 + 1, G0 + 3): dpp("v_add_f32", dst, dst, dst, S8[1])
    for r in range(4): rne(G0 + r, G0 + r)
    for r in (G0, G0 + 1): A(f"v_mul_f32 v{r}, 0xbfb8aa3b, v{r}")
    for r in (G0, G0 + 1): A(f"v_exp_f32 v{r}, v{r}")
    for r in (G0, G0 + 1): A(f"v_add_f32 v{r}, 1.0, v{r}")
    for r in (G0, G0 + 1): A(f"v_rcp_f32 v{r}, v{r}")
    for r in (G0, G0 + 1): rne(r, r)
    for r in (G0, G0 + 1): A(f"v_mul_f32 v{r}, v{r}, v{r+2}")
    for r in (G0, G0 + 1): A(f"v_cvt_pk_bf16_f32 v{r}, v{r}, v{r}")
    buildB(BM, G0); buildB(BM + 4, G0 + 1)
    D0 = AC + 4
    mfma(D0, BM, DW, True); mfma(D0 + 4, BM, DW + 8, True)
    mfma(D0, BM + 4, DW + 4, False); mfma(D0 + 4, BM + 4, DW + 12, False)
    A("s_mov_b32 s60, 0x00ff00ff"); A("s_mov_b32 s61, 0x00ff00ff")
    for r in range(4): A(f"v_permlane32_swap_b32 v{D0+r}, v{D0+4+r}")
    for r in range(4): dpp("v_add_f32", D0 + r, D0 + 4 + r, D0 + r, "row_ror:8")
    A("s_mov_b64 exec, s[60:61]")
    A(f"global_store_dwordx4 v14, v[{D0}:{D0+3}], s[26:27] offset:{OFF_T} sc1")
    exec_all()
    stamp(13)
    if fbar: A("s_barrier")
    A("s_branch L_exit")
    g.label("L_fin")
    A("s_sub_u32 s60, s2, 160")
    DA, DD = Q0, K0
    A("v_bfe_u32 v5, v0, 2, 3"); A(f"v_mul_u32_u24 v{DA}, {SCL}, v5"); A("v_lshrrev_b32 v5, 5, v0"); A(f"v_mul_u32_u24 v5, {SI}, v5"); A(f"v_add_u32 v{DA}, v{DA}, v5"); A("v_and_b32 v5, 3, v0"); A(f"v_lshl_add_u32 v{DA}, v5, 4, v{DA}")
    A("s_min_u32 s62, s60, 39")
    A("s_lshl_b32 s61, s62, 6"); A(f"s_add_u32 s61, s61, {20*SI}"); A(f"v_add_u32 v{DA}, s61, v{DA}")
    for i in range(1, 6): A(f"v_add_u32 v{DA+i}, {2*SI*i}, v{DA}")
    A(f"v_and_b32 v5, 15, v{vRC4}"); A("v_and_b32 v6, 3, v0"); A("v_lshl_add_u32 v5, v6, 5, v5")
    A("s_lshr_b32 s61, s62, 2"); A("s_lshl_b32 s61, s61, 8"); A("s_and_b32 s63, s62, 1"); A("s_lshl_b32 s63, s63, 7"); A("s_add_u32 s61, s61, s63")
    A("s_bfe_u32 s63, s62, 0x10001"); A("s_lshl_b32 s63, s63, 4"); A("s_add_u32 s61, s61, s63"); A("v_add_u32 v14, s61, v5")
    A("s_cmp_ge_u32 s2, 200"); A("s_cbranch_scc1 L_exit2")
    A("s_barrier")
    A(f"ds_read_b32 v10, v14 offset:{L_HB}")
    A("v_lshrrev_b32 v14, 1, v14")
    if fbar: A("s_barrier")
    ditems = [(f"global_load_dwordx4 v[{DD+4*i}:{DD+4*i+3}], v{DA+i}, s[26:27] offset:{OFF_T} sc1", range(DD + 4 * i, DD + 4 * i + 4)) for i in range(6)]
    if "d" in asy: poll_async("d", ditems, 5)
    else: poll_sel("d", ditems, 5)
    stamp(12)
    DS_ = DD; DD = V0
    tree4_oop(6, DS_, DD)
    red4_rows(DD)
    dpp("v_add_f32", DD, DD, DD, "row_ror:8"); dpp("v_add_f32", DD, DD, DD, "row_ror:4")
    rne(DD, DD)
    A("s_waitcnt lgkmcnt(0)")
    A(f"v_add_f32 v{DD}, v{DD}, v10")
    A(f"v_cvt_pk_bf16_f32 v{DD}, v{DD}, v{DD}")
    A("s_mov_b32 s60, 0x000f000f"); A("s_mov_b32 s61, 0x000f000f")
    A("s_mov_b64 exec, s[60:61]")
    A(f"global_store_short v14, v{DD}, s[22:23]")
    exec_all()
    A("s_cmp_lg_u32 s2, 160"); A("s_cbranch_scc1 L_noep")
    A("v_mov_b32 v6, s67"); A("v_mov_b32 v5, 0")
    A("s_mov_b64 exec, 1")
    A("global_store_dword v5, v6, s[26:27] offset:-4096 sc1")
    exec_all()
    g.label("L_noep")
    stamp(13)
    if stamps:
        A("s_branch L_exit")
        g.label("L_exit2")
        A("s_barrier")
        if fbar: A("s_barrier")
    else:
        g.label("L_exit2")
    g.label("L_exit")
    if stamps:
        A("s_waitcnt lgkmcnt(0)")
        for _ in range(3): A("s_sleep 127")
        A("s_lshl_b32 s60, s2, 4"); A("s_add_u32 s60, s60, s3"); A("s_lshl_b32 s60, s60, 6"); A(f"s_add_u32 s60, s60, {STAMP_BASE}")
        A("v_mov_b32 v5, s60")
        for k in range(NST):
            A(f"v_mov_b32 v6, s{70+2*k}")
            A(f"global_store_dword v5, v6, s[26:27] offset:{4*k}")
    g.label("L_end")
    A("s_endpgm")
    g.raw(".p2align 6")
    g.raw("L_code_end:")
    g.raw(f".set CODE_BYTES, L_code_end - {KN}")
    g.raw('.section .rodata,"a"'); g.raw(".p2align 6"); g.raw(f".amdhsa_kernel {KN}")
    g.raw("  .amdhsa_next_free_vgpr 256"); g.raw("  .amdhsa_next_free_sgpr 100"); g.raw("  .amdhsa_accum_offset 256")
    g.raw("  .amdhsa_group_segment_fixed_size 0"); g.raw("  .amdhsa_kernarg_size 96"); g.raw("  .amdhsa_user_sgpr_count 2")
    g.raw("  .amdhsa_user_sgpr_kernarg_segment_ptr 1"); g.raw("  .amdhsa_system_sgpr_workgroup_id_x 1"); g.raw(".end_amdhsa_kernel")
    return g.text()

if __name__ == "__main__":
    import argparse, json
    ap = argparse.ArgumentParser()
    ap.add_argument("-o", default="sequential_preLN__sliding_block_cached__glu_gated_glu__decode.s")
    ap.add_argument("--cfg", default="{}")
    a = ap.parse_args()
    open(a.o, "w").write(gen(**json.loads(a.cfg)))
```
